```python
import torch

def _softmax(x, axis=-1):
    return torch.softmax(x, dim=axis)
def _gelu(x):
    return torch.nn.functional.gelu(x, approximate="tanh")
def _silu(x):
    return torch.nn.functional.silu(x)
def _sigmoid(x):
    return torch.sigmoid(x)
def _layernorm(x, axis=-1, eps=1e-5):
    m = x.mean(dim=axis, keepdim=True)
    v = x.var(dim=axis, keepdim=True, unbiased=False)
    return (x - m) / torch.sqrt(v + eps)
def _scatter_add(tgt, idx, src, axis=0):
    return tgt.clone().index_add_(axis, idx, src)
def _segment_sum(src, seg, n):
    out = torch.zeros((n,) + src.shape[1:], dtype=src.dtype)
    return out.index_add_(0, seg, src)
def _pad(x, pw):
    flat = tuple(v for pair in reversed(pw) for v in pair)
    return torch.nn.functional.pad(x, flat)

kernel_name = 'standalone__channel_attn_cbam__vision'

def setup_inputs():

    _w = (lambda a: (lambda t: t.to(torch.bfloat16) if t.is_floating_point() else t)(torch.as_tensor(a)))
    H = W = 224
    C = 192
    r = max(C // 4, 1)
    return {
        "x": _w((lambda *s: torch.randn(*s, dtype=torch.bfloat16) * 0.2)(1, H, W, C) + (lambda *s: torch.randn(*s, dtype=torch.bfloat16) * 0.2)(1, 1, 1, C) * 2.0),
        "w1": _w((lambda *s: torch.randn(*s, dtype=torch.bfloat16) * 0.2)(C, r)),
        "w2": _w((lambda *s: torch.randn(*s, dtype=torch.bfloat16) * 0.2)(r, C)),
    }

def reference(x, w1, w2):
    B, H, W, C = x.shape
    xf = x.reshape(B, H * W, C)
    gap = torch.mean(xf, 1)
    gmp = torch.amax(xf, 1)
    h_a = gap @ w1
    h_a = h_a * (lambda x, dt: x.to(dt))(h_a > 0, h_a.dtype)
    h_m = gmp @ w1
    h_m = h_m * (lambda x, dt: x.to(dt))(h_m > 0, h_m.dtype)
    scale = _sigmoid(h_a @ w2 + h_m @ w2)
    return x * scale[:, None, None, :]
```

```python
import sys, struct
NAME="standalone__channel_attn_cbam__vision_kernel"
HEAD="""; Kernarg layout for this problem (48 bytes, ptrs only, base s[0:1]):
"""
def f2u(f): return struct.unpack("<I",struct.pack("<f",f))[0]

def gen(ldf="nt", stf="nt", stamps=False, OS=32, pf=True, spin=1<<20, prepoll=False, f2at=None):
    NP=224; R=24; L=28; IS=15360; OUTB=0x60000; STAMP=0x100000
    SC=36864; LDS=SC+768
    o=[]; a=o.append
    nst=[0]
    def stamp(i):
        if stamps: a(f"s_memrealtime s[{60+2*i}:{61+2*i}]")
    a(HEAD+f"; @launch grid=({NP+R},1,1) block=(192,1,1) lds={LDS}")
    a(f'.amdgcn_target "amdgcn-amd-amdhsa--gfx950"\n.text\n.globl {NAME}\n.p2align 8\n.type {NAME},@function\n{NAME}:')
    X=0x10
    W1=128
    W2=200
    T=224
    vOff=1; vLane=2
    stamp(0)
    a("s_load_dwordx4 s[4:7], s[0:1], 0")
    a("s_load_dwordx4 s[8:11], s[0:1], 16")
    a("s_load_dwordx4 s[12:15], s[0:1], 32")
    a(f"s_cmp_ge_u32 s2, {NP+R}")
    a("s_cbranch_scc1 L_end")
    npf=0
    if pf:
        a("s_getpc_b64 s[30:31]")
        a("v_mul_u32_u24 v4, 48, v0")
        a("global_load_dword v5, v4, s[30:31]")
        npf=1
    a("v_lshrrev_b32 v3, 6, v0")
    a("v_and_b32 v2, 63, v0")
    a("v_readfirstlane_b32 s3, v3")
    a(f"s_cmp_lt_u32 s2, {R}")
    a("s_cbranch_scc1 L_red")
    a(f"s_sub_u32 s2, s2, {R}")
    a("s_mul_i32 s16, s2, 86016")
    a("v_lshrrev_b32 v4, 3, v2")
    a("v_and_b32 v6, 7, v2")
    a("v_mul_u32_u24 v4, 384, v4")
    a("v_lshl_add_u32 v4, v3, 7, v4")
    a("v_lshl_add_u32 v4, v6, 4, v4")
    a("s_add_u32 s16, s16, 3072")
    a("s_movk_i32 s17, 9216")
    a("v_add_u32 v1, s16, v4")
    a("v_mov_b32 v4, v1")
    a("s_waitcnt lgkmcnt(0)")
    for i in range(L):
        off=(i%3-1)*3072
        a(f"global_load_dwordx4 v[{X+4*i}:{X+4*i+3}], v4, s[4:5] offset:{off} {ldf}")
        if i%3==2: a("v_add_u32 v4, s17, v4")
    a("v_lshlrev_b32 v7, 2, v2")
    a("global_load_dword v8, v7, s[12:13] sc1")
    stamp(1)
    A=T; ACC=T+4; ML=T+8; MH=T+12; TA=T+16; TB=T+20
    a("v_and_b32 v9, 1, v2")
    a("v_lshlrev_b32 v9, 4, v9")
    a("s_movk_i32 s18, 0x3f80")
    a("v_lshlrev_b32 v9, v9, s18")
    for d in range(4): a(f"v_mov_b32 v{A+d}, 0")
    for d in range(4): a(f"v_mov_b32_dpp v{A+d}, v9 quad_perm:[0,1,2,3] row_mask:0xf bank_mask:{1<<d:#x}")
    a("s_mov_b32 s19, 0xffff0000")
    a("v_lshrrev_b32 v9, 4, v2")
    a("v_and_b32 v10, 4, v2")
    a("v_add_u32 v9, v9, v10")
    a("v_lshl_add_u32 v9, v3, 3, v9")
    a(f"v_mul_u32_u24 v9, {IS}, v9")
    a("v_and_b32 v10, 3, v2")
    a("v_lshl_add_u32 v9, v10, 4, v9")
    a("s_lshl_b32 s20, s2, 6")
    a("v_add_u32 v9, s20, v9")
    extra=1
    for p in range(L//2):
        i=2*p; xa=X+4*i; xb=xa+4
        if f2at is not None and p==f2at:
            a("global_load_dword v11, v7, s[12:13] sc1"); extra=2
        a(f"s_waitcnt vmcnt({L-2-i+extra})")
        if p==0: stamp(2)
        c = "0" if p==0 else f"v[{ACC}:{ACC+3}]"
        a(f"v_mfma_f32_16x16x32_bf16 v[{ACC}:{ACC+3}], v[{A}:{A+3}], v[{xa}:{xa+3}], {c}")
        for d in range(4): a(f"v_lshlrev_b32 v{TA+d}, 16, v{xa+d}")
        a(f"v_mfma_f32_16x16x32_bf16 v[{ACC}:{ACC+3}], v[{A}:{A+3}], v[{xb}:{xb+3}], v[{ACC}:{ACC+3}]")
        for d in range(4): a(f"v_lshlrev_b32 v{TB+d}, 16, v{xb+d}")
        for d in range(4):
            if p==0: a(f"v_max_f32 v{MH+d}, v{xa+d}, v{xb+d}")
            else: a(f"v_max3_f32 v{MH+d}, v{MH+d}, v{xa+d}, v{xb+d}")
        for d in range(4):
            if p==0: a(f"v_max_f32 v{ML+d}, v{TA+d}, v{TB+d}")
            else: a(f"v_max3_f32 v{ML+d}, v{ML+d}, v{TA+d}, v{TB+d}")
    stamp(3)
    a(f"v_permlane32_swap_b32 v{MH+0}, v{MH+2}")
    a(f"v_permlane32_swap_b32 v{MH+1}, v{MH+3}")
    a(f"v_permlane32_swap_b32 v{ML+0}, v{ML+2}")
    a(f"v_permlane32_swap_b32 v{ML+1}, v{ML+3}")
    a(f"v_max_f32 v{MH+0}, v{MH+0}, v{MH+2}")
    a(f"v_max_f32 v{MH+1}, v{MH+1}, v{MH+3}")
    a(f"v_max_f32 v{ML+0}, v{ML+0}, v{ML+2}")
    a(f"v_max_f32 v{ML+1}, v{ML+1}, v{ML+3}")
    a(f"v_add_f32_dpp v{ACC+0}, v{ACC+0}, v{ACC+0} row_ror:8 row_mask:0xf bank_mask:0xf")
    a(f"v_permlane16_swap_b32 v{MH+0}, v{MH+1}")
    a(f"v_permlane16_swap_b32 v{ML+0}, v{ML+1}")
    a(f"v_add_f32_dpp v{ACC+1}, v{ACC+1}, v{ACC+1} row_ror:8 row_mask:0xf bank_mask:0xf")
    a(f"v_max_f32 v{MH+0}, v{MH+0}, v{MH+1}")
    a(f"v_max_f32 v{ML+0}, v{ML+0}, v{ML+1}")
    a(f"v_min_u32 v{ACC+0}, -2, v{ACC+0}")
    a(f"v_max_f32_dpp v{MH+0}, v{MH+0}, v{MH+0} row_ror:8 row_mask:0xf bank_mask:0xf")
    a(f"v_max_f32_dpp v{ML+0}, v{ML+0}, v{ML+0} row_ror:8 row_mask:0xf bank_mask:0xf")
    a(f"v_min_u32 v{ACC+1}, -2, v{ACC+1}")
    a(f"v_and_b32 v{ACC+3}, s19, v{MH+0}")
    a(f"v_and_b32 v{ACC+2}, s19, v{ML+0}")
    a(f"s_mov_b32 s21, {spin}")
    a(f"s_mov_b32 s22, {(1<<R)-1:#x}")
    a(f"s_waitcnt vmcnt({extra-1})")
    a("v_cmp_ne_u32 vcc, 0, v8")
    a("s_and_b32 s23, vcc_lo, s22")
    a("s_cmp_eq_u32 s23, s22")
    a("s_cbranch_scc0 L_flagslow")
    a("L_flagok:")
    a("s_mov_b32 exec_lo, 0x00ff00ff\ns_mov_b32 exec_hi, 0x00ff00ff")
    a(f"global_store_dwordx4 v9, v[{ACC}:{ACC+3}], s[14:15] sc1")
    a("s_mov_b64 exec, -1")
    stamp(4)
    a("s_mul_i32 s24, s3, 6144")
    a("v_lshl_add_u32 v10, v2, 4, s24")
    a("s_mov_b32 m0, s24")
    a("v_add_u32 v11, 3072, v10")
    for (base,vv,dm) in (("s[6:7]",10,3072),("s[6:7]",11,18432-3072),("s[8:9]",10,3072),("s[8:9]",11,0)):
        for k in range(3): a(f"global_load_lds_dwordx4 v{vv}, {base} offset:{1024*k}")
        if dm: a(f"s_add_u32 m0, m0, {dm}\ns_nop 0")
    a("v_bfe_u32 v10, v2, 3, 1")
    a("v_bfe_u32 v11, v2, 2, 1")
    a("v_lshl_add_u32 v10, v10, 3, v11")
    a("v_lshrrev_b32 v11, 4, v2")
    a("v_lshl_add_u32 v10, v11, 1, v10")
    a("v_mul_u32_u24 v10, 96, v10")
    a("v_and_b32 v12, 3, v2")
    a("v_lshl_add_u32 v10, v12, 3, v10")
    a("v_lshrrev_b32 v13, 2, v2")
    a("v_mul_u32_u24 v13, 384, v13")
    a("v_lshl_add_u32 v13, v12, 3, v13")
    a("v_lshl_add_u32 v13, v3, 7, v13")
    a("v_bfe_u32 v12, v2, 1, 3")
    a("v_lshl_add_u32 v12, v12, 2, v11")
    a(f"v_mul_u32_u24 v12, {OS}, v12")
    a("v_and_b32 v14, 1, v2")
    a("v_lshl_add_u32 v12, v14, 4, v12")
    a(f"v_add_u32 v12, {OUTB}, v12")
    a(f"v_lshlrev_b32 v14, 2, v0")
    a(f"v_lshlrev_b32 v15, 8, v3")
    a(f"v_lshl_add_u32 v15, v6, 5, v15")
    a("s_waitcnt vmcnt(0)")
    a("s_barrier")
    for s in range(6):
        for t in range(3):
            for h in range(2):
                r=W1+(s*3+t)*4+2*h
                a(f"ds_read_b64_tr_b16 v[{r}:{r+1}], v10 offset:{(32*s+16*h)*96+32*t}")
    for t in range(4):
        for u in range(3):
            r=W2+t*6+2*u
            a(f"ds_read_b64_tr_b16 v[{r}:{r+1}], v13 offset:{18432+u*6144+32*t}")
    G=T; B0=T+4; B1=T+8; D1=T+12; H=T+24
    a("s_mov_b32 exec_lo, 0x0fff0fff\ns_mov_b32 exec_hi, 0x0fff0fff")
    a(f"s_mov_b32 s21, {spin}")
    a("s_waitcnt lgkmcnt(0)")
    stamp(5)
    a("L_poll2:")
    a(f"global_load_dwordx4 v[{G}:{G+3}], v12, s[14:15] sc1")
    a("s_sub_u32 s21, s21, 1")
    a("s_cbranch_scc1 L_poll2done")
    a("s_waitcnt vmcnt(0)")
    a(f"v_max3_u32 v8, v{G}, v{G+1}, v{G+2}")
    a(f"v_max_u32 v8, v8, v{G+3}")
    a("v_cmp_eq_u32 vcc, -1, v8")
    a("s_cbranch_vccnz L_poll2")
    a("L_poll2done:")
    a("s_waitcnt vmcnt(0)")
    a("s_mov_b64 exec, -1")
    stamp(6)
    B=[G,B0,B1,B0,B1,B0]
    for s in range(6):
        for t in range(3):
            w=W1+(s*3+t)*4; d=D1+4*t
            c="0" if s==0 else f"v[{d}:{d+3}]"
            a(f"v_mfma_f32_16x16x32_bf16 v[{d}:{d+3}], v[{w}:{w+3}], v[{B[s]}:{B[s]+3}], {c}")
            if s<5 and t<2:
                for k in (2*t,2*t+1):
                    a(f"v_mov_b32_dpp v{B[s+1]+k}, v{G+k} row_shl:{2*(s+1)} row_mask:0xf bank_mask:0xf bound_ctrl:1")
        if s<5: a("s_nop 0")
    a("s_nop 5")
    for t in range(3):
        for i in range(4): a(f"v_maximum3_f32 v{D1+4*t+i}, v{D1+4*t+i}, 0, 0")
        a(f"v_cvt_pk_bf16_f32 v{H+2*t}, v{D1+4*t}, v{D1+4*t+1}")
        a(f"v_cvt_pk_bf16_f32 v{H+2*t+1}, v{D1+4*t+2}, v{D1+4*t+3}")
    D2=T
    a("s_nop 1")
    for t in range(4):
        a(f"v_mfma_f32_16x16x32_bf16 v[{D2+4*t}:{D2+4*t+3}], v[{H}:{H+3}], v[{W2+6*t}:{W2+6*t+3}], 0")
    for t in range(4):
        a(f"v_mfma_f32_16x16x16_bf16 v[{D2+4*t}:{D2+4*t+3}], v[{H+4}:{H+5}], v[{W2+6*t+4}:{W2+6*t+5}], v[{D2+4*t}:{D2+4*t+3}]")
    a("s_nop 4")
    P=T+16
    for t in range(4): a(f"v_cvt_pk_bf16_f32 v{P+t}, v{D2+4*t}, v{D2+4*t+1}")
    a(f"v_permlane16_swap_b32 v{P}, v{P+1}")
    a("s_nop 0")
    a(f"v_permlane16_swap_b32 v{P+2}, v{P+3}")
    a("s_nop 1")
    a(f"v_permlane32_swap_b32 v{P}, v{P+2}")
    a(f"v_lshlrev_b32 v{P+1}, 16, v{P}")
    a(f"v_and_b32 v{P}, s19, v{P}")
    a(f"v_add_f32 v{P}, v{P}, v{P+1}")
    a(f"v_cvt_pk_bf16_f32 v{P}, v{P}, v{P}")
    a(f"v_and_b32 v{P}, s19, v{P}")
    a(f"v_mul_f32 v{P}, {f2u(-1.4426950408889634):#x}, v{P}")
    a(f"v_exp_f32 v{P}, v{P}")
    a("s_nop 0")
    a(f"v_add_f32 v{P}, 1.0, v{P}")
    a(f"v_rcp_f32 v{P}, v{P}")
    a("s_nop 0")
    a(f"v_cvt_pk_bf16_f32 v{P}, v{P}, v{P}")
    a(f"v_and_b32 v{P}, s19, v{P}")
    a(f"ds_write_b32 v14, v{P} offset:{SC}")
    S=T; U=T+8
    a("s_waitcnt lgkmcnt(0)")
    a(f"ds_read_b128 v[{S}:{S+3}], v15 offset:{SC}")
    a(f"ds_read_b128 v[{S+4}:{S+7}], v15 offset:{SC+16}")
    for i in range(L):
        x=X+4*i
        for d in range(4):
            a(f"v_lshlrev_b32 v{U+2*d}, 16, v{x+d}")
            a(f"v_and_b32 v{U+2*d+1}, s19, v{x+d}")
        if i==0:
            a("s_waitcnt lgkmcnt(0)"); stamp(7)
        for d in range(4): a(f"v_pk_mul_f32 v[{U+2*d}:{U+2*d+1}], v[{U+2*d}:{U+2*d+1}], v[{S+2*d}:{S+2*d+1}]")
        for d in range(4): a(f"v_cvt_pk_bf16_f32 v{x+d}, v{U+2*d}, v{U+2*d+1}")
        off=(i%3-1)*3072
        a(f"global_store_dwordx4 v1, v[{x}:{x+3}], s[10:11] offset:{off} {stf}")
        if i%3==2: a("v_add_u32 v1, s17, v1")
    def dump():
        if stamps:
            stamp(8); a("s_waitcnt vmcnt(0)"); stamp(9)
            a("s_waitcnt lgkmcnt(0)")
            a(f"s_mul_i32 s16, s2, 3\ns_add_u32 s16, s16, s3\ns_lshl_b32 s16, s16, 6\ns_add_u32 s16, s16, {STAMP}")
            a("s_mov_b64 exec, -1")
            a("v_mov_b32 v1, s16")
            for j in range(10): a(f"v_mov_b32 v{16+j}, s{60+2*j}")
            a("v_mov_b32 v26, s21\nv_mov_b32 v27, s25")
            a("s_mov_b64 exec, 1")
            for j in range(3): a(f"global_store_dwordx4 v1, v[{16+4*j}:{19+4*j}], s[14:15] offset:{16*j}")
    dump()
    a("L_end:\ns_endpgm")
    a("L_flagslow:")
    if f2at is not None:
        a("s_waitcnt vmcnt(0)\nv_mov_b32 v8, v11\ns_branch L_flagchk")
    a("L_flagloop:")
    a("global_load_dword v8, v7, s[12:13] sc1")
    a("s_sub_u32 s21, s21, 1")
    a("s_cbranch_scc1 L_flagok")
    a("s_waitcnt vmcnt(0)")
    a("L_flagchk:")
    if stamps: a("s_mov_b32 s25, s21")
    a("v_cmp_ne_u32 vcc, 0, v8")
    a("s_and_b32 s23, vcc_lo, s22")
    a("s_cmp_eq_u32 s23, s22")
    a("s_cbranch_scc0 L_flagloop")
    a("s_branch L_flagok")
    a("L_red:")
    a(f"s_mul_i32 s16, s2, {IS}")
    a("v_lshl_add_u32 v1, v0, 4, s16")
    for d in range(4): a(f"v_mov_b32 v{8+d}, -1")
    a("v_add_u32 v4, 3072, v1")
    a("v_add_u32 v6, 12288, v1")
    a(f"s_mul_i32 s17, s2, {OS}\ns_add_u32 s17, s17, {OUTB}")
    a("v_and_b32 v7, 7, v2")
    a("v_lshl_add_u32 v7, v7, 2, s17")
    a("s_lshl_b32 s18, s2, 2")
    a("v_mov_b32 v12, s18")
    a("s_waitcnt lgkmcnt(0)")
    for (vv,off) in ((4,-3072),(4,0),(4,3072),(6,-3072),(6,0)):
        a(f"global_store_dwordx4 v{vv}, v[8:11], s[14:15] offset:{off} sc1")
    a("s_mov_b64 exec, 0xff")
    a("global_store_dword v7, v8, s[14:15] sc1")
    a("s_mov_b64 exec, -1")
    a("s_waitcnt vmcnt(0)")
    a("s_barrier")
    a("s_cmp_eq_u32 s3, 0")
    a("s_cbranch_scc1 L_red0")
    a("v_subrev_u32 v4, 64, v0")
    a("v_mul_u32_u24 v4, 144, v4")
    a("global_load_dword v5, v4, s[6:7]\nglobal_load_dword v5, v4, s[6:7] offset:72")
    a("global_load_dword v5, v4, s[8:9]\nglobal_load_dword v5, v4, s[8:9] offset:72")
    a("s_endpgm")
    a("L_red0:")
    a("s_mov_b64 exec, 1")
    a("global_store_dword v12, v8, s[12:13] sc1")
    a("s_mov_b64 exec, -1")
    stamp(1)
    a("v_add_u32 v4, 4096, v1")
    a("v_add_u32 v6, 12288, v1")
    a(f"s_mov_b32 s21, {spin}")
    a(f"s_mov_b32 s20, {f2u(1.0/50176):#x}")
    Y=16
    def ld(i):
        vv,off=(4,1024*i-4096) if i<8 else (6,1024*i-12288)
        a(f"global_load_dwordx4 v[{Y+4*i}:{Y+4*i+3}], v{vv}, s[14:15] offset:{off} sc1")
    if prepoll:
        a("L_poll0:")
        ld(13)
        a("s_sub_u32 s21, s21, 1")
        a("s_cbranch_scc1 L_poll1")
        a("s_waitcnt vmcnt(0)")
        a(f"v_cmp_eq_u32 vcc, -1, v{Y+52}")
        a("s_cbranch_vccnz L_poll0")
        stamp(2)
    a("L_poll1:")
    for i in range(14): ld(i)
    a("s_sub_u32 s21, s21, 1")
    a("s_cbranch_scc1 L_poll1done")
    for p in range(7):
        ya=Y+8*p; yb=ya+4
        a(f"s_waitcnt vmcnt({12-2*p})")
        if p==0:
            a(f"v_max3_u32 v13, v{ya}, v{ya+1}, v{ya+2}")
            a(f"v_max3_u32 v14, v{yb}, v{yb+1}, v{yb+2}")
            a(f"v_max3_u32 v13, v13, v{ya+3}, v{yb+3}")
            a(f"v_add_f32 v8, v{ya}, v{yb}\nv_add_f32 v9, v{ya+1}, v{yb+1}")
            a(f"v_max_f32 v10, v{ya+2}, v{yb+2}\nv_max_f32 v11, v{ya+3}, v{yb+3}")
        else:
            a(f"v_max3_u32 v13, v13, v{ya}, v{ya+1}")
            a(f"v_max3_u32 v14, v14, v{ya+2}, v{ya+3}")
            a(f"v_max3_u32 v13, v13, v{yb}, v{yb+1}")
            a(f"v_max3_u32 v14, v14, v{yb+2}, v{yb+3}")
            a(f"v_pk_add_f32 v[{ya}:{ya+1}], v[{ya}:{ya+1}], v[{yb}:{yb+1}]")
            a(f"v_max3_f32 v10, v10, v{ya+2}, v{yb+2}\nv_max3_f32 v11, v11, v{ya+3}, v{yb+3}")
            a(f"v_pk_add_f32 v[8:9], v[8:9], v[{ya}:{ya+1}]")
    a("v_max_u32 v13, v13, v14")
    a("v_cmp_eq_u32 vcc, -1, v13")
    a("s_cbranch_vccnz L_poll1")
    a("L_poll1done:")
    stamp(3)
    a("v_permlane32_swap_b32 v8, v9")
    a("v_permlane32_swap_b32 v10, v11")
    a("v_add_f32 v8, v8, v9")
    a("v_max_f32 v10, v10, v11")
    a("s_nop 0")
    for rr in (4,8):
        a(f"v_add_f32_dpp v8, v8, v8 row_ror:{rr} row_mask:0xf bank_mask:0xf")
        a(f"v_max_f32_dpp v10, v10, v10 row_ror:{rr} row_mask:0xf bank_mask:0xf")
        if rr==4: a("s_nop 0")
    a("v_mov_b32 v9, v8\nv_mov_b32 v11, v10\ns_nop 0")
    a("v_permlane16_swap_b32 v8, v9")
    a("v_permlane16_swap_b32 v10, v11")
    a("v_add_f32 v8, v8, v9")
    a("v_max_f32 v10, v10, v11")
    a("v_mul_f32 v8, s20, v8")
    a("s_nop 1")
    a("v_mov_b32_dpp v8, v10 quad_perm:[0,1,2,3] row_mask:0xf bank_mask:0x2")
    a("v_mov_b32 v9, v8\ns_nop 1")
    a("v_permlane32_swap_b32 v8, v9")
    a("v_cvt_pk_bf16_f32 v8, v8, v9")
    a("v_min_u32 v8, -2, v8")
    a("s_mov_b64 exec, 0xff")
    a("global_store_dword v7, v8, s[14:15] sc1")
    if stamps:
        stamp(4)
        a(f"s_add_u32 s2, s2, {NP}")
        dump()
    a("s_endpgm")
    a("L_pad:")
    a(f".fill (9216+256-(L_pad-{NAME}))/4, 4, 0xbf810000")
    a(f""".section .rodata,"a"
.p2align 6
.amdhsa_kernel {NAME}
  .amdhsa_next_free_vgpr 256
  .amdhsa_next_free_sgpr 96
  .amdhsa_accum_offset 256
  .amdhsa_group_segment_fixed_size 0
  .amdhsa_kernarg_size 48
  .amdhsa_user_sgpr_count 2
  .amdhsa_user_sgpr_kernarg_segment_ptr 1
  .amdhsa_system_sgpr_workgroup_id_x 1
  .amdhsa_float_denorm_mode_32 3
.end_amdhsa_kernel""")
    return "\n".join(o)+"\n"
if __name__=="__main__":
    kw=eval("dict(%s)"%(sys.argv[2] if len(sys.argv)>2 else ""))
    open(sys.argv[1],"w").write(gen(**kw))
```

```python
import sys, struct
NAME="standalone__channel_attn_cbam__vision_kernel"
HEAD="""; Kernarg layout for this problem (48 bytes, ptrs only, base s[0:1]):
"""
def f2u(f): return struct.unpack("<I",struct.pack("<f",f))[0]

def gen(ldf="nt", stf="nt", stamps=False, OS=32, pf=True, spin=1<<20, prepoll=False, f2at=None, amp=None):
    NP=224; R=24; L=28; IS=15360; OUTB=0x60000; STAMP=0x100000
    SC=36864; LDS=SC+768
    o=[]; a=o.append
    nst=[0]
    def stamp(i):
        if stamps: a(f"s_memrealtime s[{60+2*i}:{61+2*i}]")
        elif amp and i in amp[:2]: a(f"{amp[3]} s[{60+2*i}:{61+2*i}]")
    a(HEAD+f"; @launch grid=({NP+R},1,1) block=(192,1,1) lds={LDS}")
    a(f'.amdgcn_target "amdgcn-amd-amdhsa--gfx950"\n.text\n.globl {NAME}\n.p2align 8\n.type {NAME},@function\n{NAME}:')
    X=0x10
    W1=128
    W2=200
    T=224
    vOff=1; vLane=2
    stamp(0)
    a("s_load_dwordx4 s[4:7], s[0:1], 0")
    a("s_load_dwordx4 s[8:11], s[0:1], 16")
    a("s_load_dwordx4 s[12:15], s[0:1], 32")
    a(f"s_cmp_ge_u32 s2, {NP+R}")
    a("s_cbranch_scc1 L_end")
    npf=0
    if pf:
        a("s_getpc_b64 s[30:31]")
        a("v_mul_u32_u24 v4, 48, v0")
        a("global_load_dword v5, v4, s[30:31]")
        npf=1
    a("v_lshrrev_b32 v3, 6, v0")
    a("v_and_b32 v2, 63, v0")
    a("v_readfirstlane_b32 s3, v3")
    a(f"s_cmp_lt_u32 s2, {R}")
    a("s_cbranch_scc1 L_red")
    a(f"s_sub_u32 s2, s2, {R}")
    a("s_mul_i32 s16, s2, 86016")
    a("v_lshrrev_b32 v4, 3, v2")
    a("v_and_b32 v6, 7, v2")
    a("v_mul_u32_u24 v4, 384, v4")
    a("v_lshl_add_u32 v4, v3, 7, v4")
    a("v_lshl_add_u32 v4, v6, 4, v4")
    a("s_add_u32 s16, s16, 3072")
    a("s_movk_i32 s17, 9216")
    a("v_add_u32 v1, s16, v4")
    a("v_mov_b32 v4, v1")
    a("s_waitcnt lgkmcnt(0)")
    for i in range(L):
        off=(i%3-1)*3072
        a(f"global_load_dwordx4 v[{X+4*i}:{X+4*i+3}], v4, s[4:5] offset:{off} {ldf}")
        if i%3==2: a("v_add_u32 v4, s17, v4")
    a("v_lshlrev_b32 v7, 2, v2")
    a("global_load_dword v8, v7, s[12:13] sc1")
    stamp(1)
    A=T; ACC=T+4; ML=T+8; MH=T+12; TA=T+16; TB=T+20
    a("v_and_b32 v9, 1, v2")
    a("v_lshlrev_b32 v9, 4, v9")
    a("s_movk_i32 s18, 0x3f80")
    a("v_lshlrev_b32 v9, v9, s18")
    for d in range(4): a(f"v_mov_b32 v{A+d}, 0")
    for d in range(4): a(f"v_mov_b32_dpp v{A+d}, v9 quad_perm:[0,1,2,3] row_mask:0xf bank_mask:{1<<d:#x}")
    a("s_mov_b32 s19, 0xffff0000")
    a("v_lshrrev_b32 v9, 4, v2")
    a("v_and_b32 v10, 4, v2")
    a("v_add_u32 v9, v9, v10")
    a("v_lshl_add_u32 v9, v3, 3, v9")
    a(f"v_mul_u32_u24 v9, {IS}, v9")
    a("v_and_b32 v10, 3, v2")
    a("v_lshl_add_u32 v9, v10, 4, v9")
    a("s_lshl_b32 s20, s2, 6")
    a("v_add_u32 v9, s20, v9")
    extra=1
    for p in range(L//2):
        i=2*p; xa=X+4*i; xb=xa+4
        if f2at is not None and p==f2at:
            a("global_load_dword v11, v7, s[12:13] sc1"); extra=2
        a(f"s_waitcnt vmcnt({L-2-i+extra})")
        if p==0: stamp(2)
        c = "0" if p==0 else f"v[{ACC}:{ACC+3}]"
        a(f"v_mfma_f32_16x16x32_bf16 v[{ACC}:{ACC+3}], v[{A}:{A+3}], v[{xa}:{xa+3}], {c}")
        for d in range(4): a(f"v_lshlrev_b32 v{TA+d}, 16, v{xa+d}")
        a(f"v_mfma_f32_16x16x32_bf16 v[{ACC}:{ACC+3}], v[{A}:{A+3}], v[{xb}:{xb+3}], v[{ACC}:{ACC+3}]")
        for d in range(4): a(f"v_lshlrev_b32 v{TB+d}, 16, v{xb+d}")
        for d in range(4):
            if p==0: a(f"v_max_f32 v{MH+d}, v{xa+d}, v{xb+d}")
            else: a(f"v_max3_f32 v{MH+d}, v{MH+d}, v{xa+d}, v{xb+d}")
        for d in range(4):
            if p==0: a(f"v_max_f32 v{ML+d}, v{TA+d}, v{TB+d}")
            else: a(f"v_max3_f32 v{ML+d}, v{ML+d}, v{TA+d}, v{TB+d}")
    stamp(3)
    a(f"v_permlane32_swap_b32 v{MH+0}, v{MH+2}")
    a(f"v_permlane32_swap_b32 v{MH+1}, v{MH+3}")
    a(f"v_permlane32_swap_b32 v{ML+0}, v{ML+2}")
    a(f"v_permlane32_swap_b32 v{ML+1}, v{ML+3}")
    a(f"v_max_f32 v{MH+0}, v{MH+0}, v{MH+2}")
    a(f"v_max_f32 v{MH+1}, v{MH+1}, v{MH+3}")
    a(f"v_max_f32 v{ML+0}, v{ML+0}, v{ML+2}")
    a(f"v_max_f32 v{ML+1}, v{ML+1}, v{ML+3}")
    a(f"v_add_f32_dpp v{ACC+0}, v{ACC+0}, v{ACC+0} row_ror:8 row_mask:0xf bank_mask:0xf")
    a(f"v_permlane16_swap_b32 v{MH+0}, v{MH+1}")
    a(f"v_permlane16_swap_b32 v{ML+0}, v{ML+1}")
    a(f"v_add_f32_dpp v{ACC+1}, v{ACC+1}, v{ACC+1} row_ror:8 row_mask:0xf bank_mask:0xf")
    a(f"v_max_f32 v{MH+0}, v{MH+0}, v{MH+1}")
    a(f"v_max_f32 v{ML+0}, v{ML+0}, v{ML+1}")
    a(f"v_min_u32 v{ACC+0}, -2, v{ACC+0}")
    a(f"v_max_f32_dpp v{MH+0}, v{MH+0}, v{MH+0} row_ror:8 row_mask:0xf bank_mask:0xf")
    a(f"v_max_f32_dpp v{ML+0}, v{ML+0}, v{ML+0} row_ror:8 row_mask:0xf bank_mask:0xf")
    a(f"v_min_u32 v{ACC+1}, -2, v{ACC+1}")
    a(f"v_and_b32 v{ACC+3}, s19, v{MH+0}")
    a(f"v_and_b32 v{ACC+2}, s19, v{ML+0}")
    a(f"s_mov_b32 s21, {spin}")
    a(f"s_mov_b32 s22, {(1<<R)-1:#x}")
    a(f"s_waitcnt vmcnt({extra-1})")
    a("v_cmp_ne_u32 vcc, 0, v8")
    a("s_and_b32 s23, vcc_lo, s22")
    a("s_cmp_eq_u32 s23, s22")
    a("s_cbranch_scc0 L_flagslow")
    a("L_flagok:")
    a("s_mov_b32 exec_lo, 0x00ff00ff\ns_mov_b32 exec_hi, 0x00ff00ff")
    a(f"global_store_dwordx4 v9, v[{ACC}:{ACC+3}], s[14:15] sc1")
    a("s_mov_b64 exec, -1")
    stamp(4)
    a("s_mul_i32 s24, s3, 6144")
    a("v_lshl_add_u32 v10, v2, 4, s24")
    a("s_mov_b32 m0, s24")
    a("v_add_u32 v11, 3072, v10")
    for (base,vv,dm) in (("s[6:7]",10,3072),("s[6:7]",11,18432-3072),("s[8:9]",10,3072),("s[8:9]",11,0)):
        for k in range(3): a(f"global_load_lds_dwordx4 v{vv}, {base} offset:{1024*k}")
        if dm: a(f"s_add_u32 m0, m0, {dm}\ns_nop 0")
    a("v_bfe_u32 v10, v2, 3, 1")
    a("v_bfe_u32 v11, v2, 2, 1")
    a("v_lshl_add_u32 v10, v10, 3, v11")
    a("v_lshrrev_b32 v11, 4, v2")
    a("v_lshl_add_u32 v10, v11, 1, v10")
    a("v_mul_u32_u24 v10, 96, v10")
    a("v_and_b32 v12, 3, v2")
    a("v_lshl_add_u32 v10, v12, 3, v10")
    a("v_lshrrev_b32 v13, 2, v2")
    a("v_mul_u32_u24 v13, 384, v13")
    a("v_lshl_add_u32 v13, v12, 3, v13")
    a("v_lshl_add_u32 v13, v3, 7, v13")
    a("v_bfe_u32 v12, v2, 1, 3")
    a("v_lshl_add_u32 v12, v12, 2, v11")
    a(f"v_mul_u32_u24 v12, {OS}, v12")
    a("v_and_b32 v14, 1, v2")
    a("v_lshl_add_u32 v12, v14, 4, v12")
    a(f"v_add_u32 v12, {OUTB}, v12")
    a(f"v_lshlrev_b32 v14, 2, v0")
    a(f"v_lshlrev_b32 v15, 8, v3")
    a(f"v_lshl_add_u32 v15, v6, 5, v15")
    a("s_waitcnt vmcnt(0)")
    a("s_barrier")
    for s in range(6):
        for t in range(3):
            for h in range(2):
                r=W1+(s*3+t)*4+2*h
                a(f"ds_read_b64_tr_b16 v[{r}:{r+1}], v10 offset:{(32*s+16*h)*96+32*t}")
    for t in range(4):
        for u in range(3):
            r=W2+t*6+2*u
            a(f"ds_read_b64_tr_b16 v[{r}:{r+1}], v13 offset:{18432+u*6144+32*t}")
    G=T; B0=T+4; B1=T+8; D1=T+12; H=T+24
    a("s_mov_b32 exec_lo, 0x0fff0fff\ns_mov_b32 exec_hi, 0x0fff0fff")
    a(f"s_mov_b32 s21, {spin}")
    a("s_waitcnt lgkmcnt(0)")
    stamp(5)
    a("L_poll2:")
    a(f"global_load_dwordx4 v[{G}:{G+3}], v12, s[14:15] sc1")
    a("s_sub_u32 s21, s21, 1")
    a("s_cbranch_scc1 L_poll2done")
    a("s_waitcnt vmcnt(0)")
    a(f"v_max3_u32 v8, v{G}, v{G+1}, v{G+2}")
    a(f"v_max_u32 v8, v8, v{G+3}")
    a("v_cmp_eq_u32 vcc, -1, v8")
    a("s_cbranch_vccnz L_poll2")
    a("L_poll2done:")
    a("s_waitcnt vmcnt(0)")
    a("s_mov_b64 exec, -1")
    stamp(6)
    B=[G,B0,B1,B0,B1,B0]
    for s in range(6):
        for t in range(3):
            w=W1+(s*3+t)*4; d=D1+4*t
            c="0" if s==0 else f"v[{d}:{d+3}]"
            a(f"v_mfma_f32_16x16x32_bf16 v[{d}:{d+3}], v[{w}:{w+3}], v[{B[s]}:{B[s]+3}], {c}")
            if s<5 and t<2:
                for k in (2*t,2*t+1):
                    a(f"v_mov_b32_dpp v{B[s+1]+k}, v{G+k} row_shl:{2*(s+1)} row_mask:0xf bank_mask:0xf bound_ctrl:1")
        if s<5: a("s_nop 0")
    a("s_nop 5")
    for t in range(3):
        for i in range(4): a(f"v_maximum3_f32 v{D1+4*t+i}, v{D1+4*t+i}, 0, 0")
        a(f"v_cvt_pk_bf16_f32 v{H+2*t}, v{D1+4*t}, v{D1+4*t+1}")
        a(f"v_cvt_pk_bf16_f32 v{H+2*t+1}, v{D1+4*t+2}, v{D1+4*t+3}")
    D2=T
    a("s_nop 1")
    for t in range(4):
        a(f"v_mfma_f32_16x16x32_bf16 v[{D2+4*t}:{D2+4*t+3}], v[{H}:{H+3}], v[{W2+6*t}:{W2+6*t+3}], 0")
    for t in range(4):
        a(f"v_mfma_f32_16x16x16_bf16 v[{D2+4*t}:{D2+4*t+3}], v[{H+4}:{H+5}], v[{W2+6*t+4}:{W2+6*t+5}], v[{D2+4*t}:{D2+4*t+3}]")
    a("s_nop 4")
    P=T+16
    for t in range(4): a(f"v_cvt_pk_bf16_f32 v{P+t}, v{D2+4*t}, v{D2+4*t+1}")
    a(f"v_permlane16_swap_b32 v{P}, v{P+1}")
    a("s_nop 0")
    a(f"v_permlane16_swap_b32 v{P+2}, v{P+3}")
    a("s_nop 1")
    a(f"v_permlane32_swap_b32 v{P}, v{P+2}")
    a(f"v_lshlrev_b32 v{P+1}, 16, v{P}")
    a(f"v_and_b32 v{P}, s19, v{P}")
    a(f"v_add_f32 v{P}, v{P}, v{P+1}")
    a(f"v_cvt_pk_bf16_f32 v{P}, v{P}, v{P}")
    a(f"v_and_b32 v{P}, s19, v{P}")
    a(f"v_mul_f32 v{P}, {f2u(-1.4426950408889634):#x}, v{P}")
    a(f"v_exp_f32 v{P}, v{P}")
    a("s_nop 0")
    a(f"v_add_f32 v{P}, 1.0, v{P}")
    a(f"v_rcp_f32 v{P}, v{P}")
    a("s_nop 0")
    a(f"v_cvt_pk_bf16_f32 v{P}, v{P}, v{P}")
    a(f"v_and_b32 v{P}, s19, v{P}")
    a(f"ds_write_b32 v14, v{P} offset:{SC}")
    S=T; U=T+8
    a("s_waitcnt lgkmcnt(0)")
    a(f"ds_read_b128 v[{S}:{S+3}], v15 offset:{SC}")
    a(f"ds_read_b128 v[{S+4}:{S+7}], v15 offset:{SC+16}")
    for i in range(L):
        x=X+4*i
        for d in range(4):
            a(f"v_lshlrev_b32 v{U+2*d}, 16, v{x+d}")
            a(f"v_and_b32 v{U+2*d+1}, s19, v{x+d}")
        if i==0:
            a("s_waitcnt lgkmcnt(0)"); stamp(7)
        for d in range(4): a(f"v_pk_mul_f32 v[{U+2*d}:{U+2*d+1}], v[{U+2*d}:{U+2*d+1}], v[{S+2*d}:{S+2*d+1}]")
        for d in range(4): a(f"v_cvt_pk_bf16_f32 v{x+d}, v{U+2*d}, v{U+2*d+1}")
        off=(i%3-1)*3072
        a(f"global_store_dwordx4 v1, v[{x}:{x+3}], s[10:11] offset:{off} {stf}")
        if i%3==2: a("v_add_u32 v1, s17, v1")
    def dump():
        if stamps:
            stamp(8); a("s_waitcnt vmcnt(0)"); stamp(9)
            a("s_waitcnt lgkmcnt(0)")
            a(f"s_mul_i32 s16, s2, 3\ns_add_u32 s16, s16, s3\ns_lshl_b32 s16, s16, 6\ns_add_u32 s16, s16, {STAMP}")
            a("s_mov_b64 exec, -1")
            a("v_mov_b32 v1, s16")
            for j in range(10): a(f"v_mov_b32 v{16+j}, s{60+2*j}")
            a("v_mov_b32 v26, s21\nv_mov_b32 v27, s25")
            a("s_mov_b64 exec, 1")
            for j in range(3): a(f"global_store_dwordx4 v1, v[{16+4*j}:{19+4*j}], s[14:15] offset:{16*j}")
    dump()
    if amp:
        stamp(8); a("s_waitcnt vmcnt(0)"); stamp(9)
        if amp[4] is not None: a(f"s_cmp_eq_u32 s2, {amp[4]}\ns_cbranch_scc0 L_end")
        a("s_memrealtime s[40:41]\ns_waitcnt lgkmcnt(0)")
        a(f"s_sub_u32 s16, s{60+2*amp[1]}, s{60+2*amp[0]}\ns_mul_i32 s16, s16, {amp[2]}\ns_lshr_b32 s16, s16, 4\ns_min_u32 s16, s16, 100000")
        if len(amp)>5: a(f"s_mov_b32 s16, {amp[5]}")
        a("L_amp:\ns_memrealtime s[42:43]\ns_waitcnt lgkmcnt(0)\ns_sub_u32 s17, s42, s40\ns_cmp_lt_u32 s17, s16\ns_cbranch_scc1 L_amp")
    a("L_end:\ns_endpgm")
    a("L_flagslow:")
    if f2at is not None:
        a("s_waitcnt vmcnt(0)\nv_mov_b32 v8, v11\ns_branch L_flagchk")
    a("L_flagloop:")
    a("global_load_dword v8, v7, s[12:13] sc1")
    a("s_sub_u32 s21, s21, 1")
    a("s_cbranch_scc1 L_flagok")
    a("s_waitcnt vmcnt(0)")
    a("L_flagchk:")
    if stamps: a("s_mov_b32 s25, s21")
    a("v_cmp_ne_u32 vcc, 0, v8")
    a("s_and_b32 s23, vcc_lo, s22")
    a("s_cmp_eq_u32 s23, s22")
    a("s_cbranch_scc0 L_flagloop")
    a("s_branch L_flagok")
    a("L_red:")
    a(f"s_mul_i32 s16, s2, {IS}")
    a("v_lshl_add_u32 v1, v0, 4, s16")
    for d in range(4): a(f"v_mov_b32 v{8+d}, -1")
    a("v_add_u32 v4, 3072, v1")
    a("v_add_u32 v6, 12288, v1")
    a(f"s_mul_i32 s17, s2, {OS}\ns_add_u32 s17, s17, {OUTB}")
    a("v_and_b32 v7, 7, v2")
    a("v_lshl_add_u32 v7, v7, 2, s17")
    a("s_lshl_b32 s18, s2, 2")
    a("v_mov_b32 v12, s18")
    a("s_waitcnt lgkmcnt(0)")
    for (vv,off) in ((4,-3072),(4,0),(4,3072),(6,-3072),(6,0)):
        a(f"global_store_dwordx4 v{vv}, v[8:11], s[14:15] offset:{off} sc1")
    a("s_mov_b64 exec, 0xff")
    a("global_store_dword v7, v8, s[14:15] sc1")
    a("s_mov_b64 exec, -1")
    a("s_waitcnt vmcnt(0)")
    a("s_barrier")
    a("s_cmp_eq_u32 s3, 0")
    a("s_cbranch_scc1 L_red0")
    a("v_subrev_u32 v4, 64, v0")
    a("v_mul_u32_u24 v4, 144, v4")
    a("global_load_dword v5, v4, s[6:7]\nglobal_load_dword v5, v4, s[6:7] offset:72")
    a("global_load_dword v5, v4, s[8:9]\nglobal_load_dword v5, v4, s[8:9] offset:72")
    a("s_endpgm")
    a("L_red0:")
    a("s_mov_b64 exec, 1")
    a("global_store_dword v12, v8, s[12:13] sc1")
    a("s_mov_b64 exec, -1")
    stamp(1)
    a("v_add_u32 v4, 4096, v1")
    a("v_add_u32 v6, 12288, v1")
    a(f"s_mov_b32 s21, {spin}")
    a(f"s_mov_b32 s20, {f2u(1.0/50176):#x}")
    Y=16
    def ld(i):
        vv,off=(4,1024*i-4096) if i<8 else (6,1024*i-12288)
        a(f"global_load_dwordx4 v[{Y+4*i}:{Y+4*i+3}], v{vv}, s[14:15] offset:{off} sc1")
    if prepoll:
        a("L_poll0:")
        ld(13)
        a("s_sub_u32 s21, s21, 1")
        a("s_cbranch_scc1 L_poll1")
        a("s_waitcnt vmcnt(0)")
        a(f"v_cmp_eq_u32 vcc, -1, v{Y+52}")
        a("s_cbranch_vccnz L_poll0")
        stamp(2)
    a("L_poll1:")
    for i in range(14): ld(i)
    a("s_sub_u32 s21, s21, 1")
    a("s_cbranch_scc1 L_poll1done")
    for p in range(7):
        ya=Y+8*p; yb=ya+4
        a(f"s_waitcnt vmcnt({12-2*p})")
        if p==0:
            a(f"v_max3_u32 v13, v{ya}, v{ya+1}, v{ya+2}")
            a(f"v_max3_u32 v14, v{yb}, v{yb+1}, v{yb+2}")
            a(f"v_max3_u32 v13, v13, v{ya+3}, v{yb+3}")
            a(f"v_add_f32 v8, v{ya}, v{yb}\nv_add_f32 v9, v{ya+1}, v{yb+1}")
            a(f"v_max_f32 v10, v{ya+2}, v{yb+2}\nv_max_f32 v11, v{ya+3}, v{yb+3}")
        else:
            a(f"v_max3_u32 v13, v13, v{ya}, v{ya+1}")
            a(f"v_max3_u32 v14, v14, v{ya+2}, v{ya+3}")
            a(f"v_max3_u32 v13, v13, v{yb}, v{yb+1}")
            a(f"v_max3_u32 v14, v14, v{yb+2}, v{yb+3}")
            a(f"v_pk_add_f32 v[{ya}:{ya+1}], v[{ya}:{ya+1}], v[{yb}:{yb+1}]")
            a(f"v_max3_f32 v10, v10, v{ya+2}, v{yb+2}\nv_max3_f32 v11, v11, v{ya+3}, v{yb+3}")
            a(f"v_pk_add_f32 v[8:9], v[8:9], v[{ya}:{ya+1}]")
    a("v_max_u32 v13, v13, v14")
    a("v_cmp_eq_u32 vcc, -1, v13")
    a("s_cbranch_vccnz L_poll1")
    a("L_poll1done:")
    stamp(3)
    a("v_permlane32_swap_b32 v8, v9")
    a("v_permlane32_swap_b32 v10, v11")
    a("v_add_f32 v8, v8, v9")
    a("v_max_f32 v10, v10, v11")
    a("s_nop 0")
    for rr in (4,8):
        a(f"v_add_f32_dpp v8, v8, v8 row_ror:{rr} row_mask:0xf bank_mask:0xf")
        a(f"v_max_f32_dpp v10, v10, v10 row_ror:{rr} row_mask:0xf bank_mask:0xf")
        if rr==4: a("s_nop 0")
    a("v_mov_b32 v9, v8\nv_mov_b32 v11, v10\ns_nop 0")
    a("v_permlane16_swap_b32 v8, v9")
    a("v_permlane16_swap_b32 v10, v11")
    a("v_add_f32 v8, v8, v9")
    a("v_max_f32 v10, v10, v11")
    a("v_mul_f32 v8, s20, v8")
    a("s_nop 1")
    a("v_mov_b32_dpp v8, v10 quad_perm:[0,1,2,3] row_mask:0xf bank_mask:0x2")
    a("v_mov_b32 v9, v8\ns_nop 1")
    a("v_permlane32_swap_b32 v8, v9")
    a("v_cvt_pk_bf16_f32 v8, v8, v9")
    a("v_min_u32 v8, -2, v8")
    a("s_mov_b64 exec, 0xff")
    a("global_store_dword v7, v8, s[14:15] sc1")
    if stamps:
        stamp(4)
        a(f"s_add_u32 s2, s2, {NP}")
        dump()
    a("s_endpgm")
    a("L_pad:")
    a(f".fill (9216+256-(L_pad-{NAME}))/4, 4, 0xbf810000")
    a(f""".section .rodata,"a"
.p2align 6
.amdhsa_kernel {NAME}
  .amdhsa_next_free_vgpr 256
  .amdhsa_next_free_sgpr 96
  .amdhsa_accum_offset 256
  .amdhsa_group_segment_fixed_size 0
  .amdhsa_kernarg_size 48
  .amdhsa_user_sgpr_count 2
  .amdhsa_user_sgpr_kernarg_segment_ptr 1
  .amdhsa_system_sgpr_workgroup_id_x 1
  .amdhsa_float_denorm_mode_32 3
.end_amdhsa_kernel""")
    return "\n".join(o)+"\n"
if __name__=="__main__":
    kw=eval("dict(%s)"%(sys.argv[2] if len(sys.argv)>2 else ""))
    open(sys.argv[1],"w").write(gen(**kw))
```

```python
import sys, struct
NAME="standalone__channel_attn_cbam__vision_kernel"
HEAD="""; Kernarg layout for this problem (48 bytes, ptrs only, base s[0:1]):
"""
def f2u(f): return struct.unpack("<I",struct.pack("<f",f))[0]

def gen(ldf="nt", stf="nt", stamps=False, OS=32, pf=True, spin=1<<20, prepoll=False, f2at=None, amp=None, touch='', nodsw=False):
    NP=224; R=24; L=28; IS=15360; OUTB=0x60000; STAMP=0x100000
    SC=36864; LDS=SC+768
    o=[]; a=o.append
    nst=[0]
    def stamp(i):
        if stamps: a(f"s_memrealtime s[{60+2*i}:{61+2*i}]")
        elif amp and i in amp[:2]: a(f"{amp[3]} s[{60+2*i}:{61+2*i}]")
    a(HEAD+f"; @launch grid=({NP+R},1,1) block=(192,1,1) lds={LDS}")
    a(f'.amdgcn_target "amdgcn-amd-amdhsa--gfx950"\n.text\n.globl {NAME}\n.p2align 8\n.type {NAME},@function\n{NAME}:')
    X=0x10
    W1=128
    W2=200
    T=224
    vOff=1; vLane=2
    stamp(0)
    a("s_load_dwordx4 s[4:7], s[0:1], 0")
    a("s_load_dwordx4 s[8:11], s[0:1], 16")
    a("s_load_dwordx4 s[12:15], s[0:1], 32")
    a(f"s_cmp_ge_u32 s2, {NP+R}")
    a("s_cbranch_scc1 L_end")
    npf=0
    if pf:
        a("s_getpc_b64 s[30:31]")
        a("v_mul_u32_u24 v4, 48, v0")
        a("global_load_dword v5, v4, s[30:31]")
        npf=1
    a("v_lshrrev_b32 v3, 6, v0")
    a("v_and_b32 v2, 63, v0")
    a("v_readfirstlane_b32 s3, v3")
    a(f"s_cmp_lt_u32 s2, {R}")
    a("s_cbranch_scc1 L_red")
    a(f"s_sub_u32 s2, s2, {R}")
    a("s_mul_i32 s16, s2, 86016")
    a("v_lshrrev_b32 v4, 3, v2")
    a("v_and_b32 v6, 7, v2")
    a("v_mul_u32_u24 v4, 384, v4")
    a("v_lshl_add_u32 v4, v3, 7, v4")
    a("v_lshl_add_u32 v4, v6, 4, v4")
    a("s_add_u32 s16, s16, 3072")
    a("s_movk_i32 s17, 9216")
    a("v_add_u32 v1, s16, v4")
    a("v_mov_b32 v4, v1")
    a("s_waitcnt lgkmcnt(0)")
    for i in range(L):
        off=(i%3-1)*3072
        a(f"global_load_dwordx4 v[{X+4*i}:{X+4*i+3}], v4, s[4:5] offset:{off} {ldf}")
        if i%3==2: a("v_add_u32 v4, s17, v4")
    a("v_lshlrev_b32 v7, 2, v2")
    a("global_load_dword v8, v7, s[12:13] sc1")
    stamp(1)
    A=T; ACC=T+4; ML=T+8; MH=T+12; TA=T+16; TB=T+20
    a("v_and_b32 v9, 1, v2")
    a("v_lshlrev_b32 v9, 4, v9")
    a("s_movk_i32 s18, 0x3f80")
    a("v_lshlrev_b32 v9, v9, s18")
    for d in range(4): a(f"v_mov_b32 v{A+d}, 0")
    for d in range(4): a(f"v_mov_b32_dpp v{A+d}, v9 quad_perm:[0,1,2,3] row_mask:0xf bank_mask:{1<<d:#x}")
    a("s_mov_b32 s19, 0xffff0000")
    a("v_lshrrev_b32 v9, 4, v2")
    a("v_and_b32 v10, 4, v2")
    a("v_add_u32 v9, v9, v10")
    a("v_lshl_add_u32 v9, v3, 3, v9")
    a(f"v_mul_u32_u24 v9, {IS}, v9")
    a("v_and_b32 v10, 3, v2")
    a("v_lshl_add_u32 v9, v10, 4, v9")
    a("s_lshl_b32 s20, s2, 6")
    a("v_add_u32 v9, s20, v9")
    extra=1
    if 'w' in touch: a("global_load_dword v5, v9, s[14:15] sc1"); extra+=1
    if 'o' in touch: a("global_load_dword v5, v1, s[10:11]"); extra+=1
    for p in range(L//2):
        i=2*p; xa=X+4*i; xb=xa+4
        if f2at is not None and p==f2at:
            a("global_load_dword v11, v7, s[12:13] sc1"); extra=2
        a(f"s_waitcnt vmcnt({L-2-i+extra})")
        if p==0: stamp(2)
        c = "0" if p==0 else f"v[{ACC}:{ACC+3}]"
        a(f"v_mfma_f32_16x16x32_bf16 v[{ACC}:{ACC+3}], v[{A}:{A+3}], v[{xa}:{xa+3}], {c}")
        for d in range(4): a(f"v_lshlrev_b32 v{TA+d}, 16, v{xa+d}")
        a(f"v_mfma_f32_16x16x32_bf16 v[{ACC}:{ACC+3}], v[{A}:{A+3}], v[{xb}:{xb+3}], v[{ACC}:{ACC+3}]")
        for d in range(4): a(f"v_lshlrev_b32 v{TB+d}, 16, v{xb+d}")
        for d in range(4):
            if p==0: a(f"v_max_f32 v{MH+d}, v{xa+d}, v{xb+d}")
            else: a(f"v_max3_f32 v{MH+d}, v{MH+d}, v{xa+d}, v{xb+d}")
        for d in range(4):
            if p==0: a(f"v_max_f32 v{ML+d}, v{TA+d}, v{TB+d}")
            else: a(f"v_max3_f32 v{ML+d}, v{ML+d}, v{TA+d}, v{TB+d}")
    stamp(3)
    a(f"v_permlane32_swap_b32 v{MH+0}, v{MH+2}")
    a(f"v_permlane32_swap_b32 v{MH+1}, v{MH+3}")
    a(f"v_permlane32_swap_b32 v{ML+0}, v{ML+2}")
    a(f"v_permlane32_swap_b32 v{ML+1}, v{ML+3}")
    a(f"v_max_f32 v{MH+0}, v{MH+0}, v{MH+2}")
    a(f"v_max_f32 v{MH+1}, v{MH+1}, v{MH+3}")
    a(f"v_max_f32 v{ML+0}, v{ML+0}, v{ML+2}")
    a(f"v_max_f32 v{ML+1}, v{ML+1}, v{ML+3}")
    a(f"v_add_f32_dpp v{ACC+0}, v{ACC+0}, v{ACC+0} row_ror:8 row_mask:0xf bank_mask:0xf")
    a(f"v_permlane16_swap_b32 v{MH+0}, v{MH+1}")
    a(f"v_permlane16_swap_b32 v{ML+0}, v{ML+1}")
    a(f"v_add_f32_dpp v{ACC+1}, v{ACC+1}, v{ACC+1} row_ror:8 row_mask:0xf bank_mask:0xf")
    a(f"v_max_f32 v{MH+0}, v{MH+0}, v{MH+1}")
    a(f"v_max_f32 v{ML+0}, v{ML+0}, v{ML+1}")
    a(f"v_min_u32 v{ACC+0}, -2, v{ACC+0}")
    a(f"v_max_f32_dpp v{MH+0}, v{MH+0}, v{MH+0} row_ror:8 row_mask:0xf bank_mask:0xf")
    a(f"v_max_f32_dpp v{ML+0}, v{ML+0}, v{ML+0} row_ror:8 row_mask:0xf bank_mask:0xf")
    a(f"v_min_u32 v{ACC+1}, -2, v{ACC+1}")
    a(f"v_and_b32 v{ACC+3}, s19, v{MH+0}")
    a(f"v_and_b32 v{ACC+2}, s19, v{ML+0}")
    a(f"s_mov_b32 s21, {spin}")
    a(f"s_mov_b32 s22, {(1<<R)-1:#x}")
    a(f"s_waitcnt vmcnt({extra-1})")
    a("v_cmp_ne_u32 vcc, 0, v8")
    a("s_and_b32 s23, vcc_lo, s22")
    a("s_cmp_eq_u32 s23, s22")
    a("s_cbranch_scc0 L_flagslow")
    a("L_flagok:")
    a("s_mov_b32 exec_lo, 0x00ff00ff\ns_mov_b32 exec_hi, 0x00ff00ff")
    a(f"global_store_dwordx4 v9, v[{ACC}:{ACC+3}], s[14:15] sc1")
    a("s_mov_b64 exec, -1")
    stamp(4)
    if 'p' in touch: a("global_load_dword v5, v1, s[10:11]")
    a("s_mul_i32 s24, s3, 6144")
    a("v_lshl_add_u32 v10, v2, 4, s24")
    a("s_mov_b32 m0, s24")
    a("v_add_u32 v11, 3072, v10")
    for (base,vv,dm) in (("s[6:7]",10,3072),("s[6:7]",11,18432-3072),("s[8:9]",10,3072),("s[8:9]",11,0)):
        for k in range(3): a(f"global_load_lds_dwordx4 v{vv}, {base} offset:{1024*k}")
        if dm: a(f"s_add_u32 m0, m0, {dm}\ns_nop 0")
    a("v_bfe_u32 v10, v2, 3, 1")
    a("v_bfe_u32 v11, v2, 2, 1")
    a("v_lshl_add_u32 v10, v10, 3, v11")
    a("v_lshrrev_b32 v11, 4, v2")
    a("v_lshl_add_u32 v10, v11, 1, v10")
    a("v_mul_u32_u24 v10, 96, v10")
    a("v_and_b32 v12, 3, v2")
    a("v_lshl_add_u32 v10, v12, 3, v10")
    a("v_lshrrev_b32 v13, 2, v2")
    a("v_mul_u32_u24 v13, 384, v13")
    a("v_lshl_add_u32 v13, v12, 3, v13")
    a("v_lshl_add_u32 v13, v3, 7, v13")
    a("v_bfe_u32 v12, v2, 1, 3")
    a("v_lshl_add_u32 v12, v12, 2, v11")
    a(f"v_mul_u32_u24 v12, {OS}, v12")
    a("v_and_b32 v14, 1, v2")
    a("v_lshl_add_u32 v12, v14, 4, v12")
    a(f"v_add_u32 v12, {OUTB}, v12")
    a(f"v_lshlrev_b32 v14, 2, v0")
    a(f"v_lshlrev_b32 v15, 8, v3")
    a(f"v_lshl_add_u32 v15, v6, 5, v15")
    a("s_waitcnt vmcnt(0)")
    a("s_barrier")
    for s in range(6):
        for t in range(3):
            for h in range(2):
                r=W1+(s*3+t)*4+2*h
                a(f"ds_read_b64_tr_b16 v[{r}:{r+1}], v10 offset:{(32*s+16*h)*96+32*t}")
    for t in range(4):
        for u in range(3):
            r=W2+t*6+2*u
            a(f"ds_read_b64_tr_b16 v[{r}:{r+1}], v13 offset:{18432+u*6144+32*t}")
    G=T; B0=T+4; B1=T+8; D1=T+12; H=T+24
    a("s_mov_b32 exec_lo, 0x0fff0fff\ns_mov_b32 exec_hi, 0x0fff0fff")
    a(f"s_mov_b32 s21, {spin}")
    a("s_waitcnt lgkmcnt(0)")
    stamp(5)
    a("L_poll2:")
    a(f"global_load_dwordx4 v[{G}:{G+3}], v12, s[14:15] sc1")
    a("s_sub_u32 s21, s21, 1")
    a("s_cbranch_scc1 L_poll2done")
    a("s_waitcnt vmcnt(0)")
    a(f"v_max3_u32 v8, v{G}, v{G+1}, v{G+2}")
    a(f"v_max_u32 v8, v8, v{G+3}")
    a("v_cmp_eq_u32 vcc, -1, v8")
    a("s_cbranch_vccnz L_poll2")
    a("L_poll2done:")
    a("s_waitcnt vmcnt(0)")
    a("s_mov_b64 exec, -1")
    stamp(6)
    B=[G,B0,B1,B0,B1,B0]
    for s in range(6):
        for t in range(3):
            w=W1+(s*3+t)*4; d=D1+4*t
            c="0" if s==0 else f"v[{d}:{d+3}]"
            a(f"v_mfma_f32_16x16x32_bf16 v[{d}:{d+3}], v[{w}:{w+3}], v[{B[s]}:{B[s]+3}], {c}")
            if s<5 and t<2:
                for k in (2*t,2*t+1):
                    a(f"v_mov_b32_dpp v{B[s+1]+k}, v{G+k} row_shl:{2*(s+1)} row_mask:0xf bank_mask:0xf bound_ctrl:1")
        if s<5: a("s_nop 0")
    a("s_nop 5")
    for t in range(3):
        for i in range(4): a(f"v_maximum3_f32 v{D1+4*t+i}, v{D1+4*t+i}, 0, 0")
        a(f"v_cvt_pk_bf16_f32 v{H+2*t}, v{D1+4*t}, v{D1+4*t+1}")
        a(f"v_cvt_pk_bf16_f32 v{H+2*t+1}, v{D1+4*t+2}, v{D1+4*t+3}")
    D2=T
    a("s_nop 1")
    for t in range(4):
        a(f"v_mfma_f32_16x16x32_bf16 v[{D2+4*t}:{D2+4*t+3}], v[{H}:{H+3}], v[{W2+6*t}:{W2+6*t+3}], 0")
    for t in range(4):
        a(f"v_mfma_f32_16x16x16_bf16 v[{D2+4*t}:{D2+4*t+3}], v[{H+4}:{H+5}], v[{W2+6*t+4}:{W2+6*t+5}], v[{D2+4*t}:{D2+4*t+3}]")
    a("s_nop 4")
    P=T+16
    for t in range(4): a(f"v_cvt_pk_bf16_f32 v{P+t}, v{D2+4*t}, v{D2+4*t+1}")
    a(f"v_permlane16_swap_b32 v{P}, v{P+1}")
    a("s_nop 0")
    a(f"v_permlane16_swap_b32 v{P+2}, v{P+3}")
    a("s_nop 1")
    a(f"v_permlane32_swap_b32 v{P}, v{P+2}")
    a(f"v_lshlrev_b32 v{P+1}, 16, v{P}")
    a(f"v_and_b32 v{P}, s19, v{P}")
    a(f"v_add_f32 v{P}, v{P}, v{P+1}")
    a(f"v_cvt_pk_bf16_f32 v{P}, v{P}, v{P}")
    a(f"v_and_b32 v{P}, s19, v{P}")
    a(f"v_mul_f32 v{P}, {f2u(-1.4426950408889634):#x}, v{P}")
    a(f"v_exp_f32 v{P}, v{P}")
    a("s_nop 0")
    a(f"v_add_f32 v{P}, 1.0, v{P}")
    a(f"v_rcp_f32 v{P}, v{P}")
    a("s_nop 0")
    a(f"v_cvt_pk_bf16_f32 v{P}, v{P}, v{P}")
    a(f"v_and_b32 v{P}, s19, v{P}")
    a(f"ds_write_b32 v14, v{P} offset:{SC}")
    S=T; U=T+8
    if not nodsw: a("s_waitcnt lgkmcnt(0)")
    a(f"ds_read_b128 v[{S}:{S+3}], v15 offset:{SC}")
    a(f"ds_read_b128 v[{S+4}:{S+7}], v15 offset:{SC+16}")
    for i in range(L):
        x=X+4*i
        for d in range(4):
            a(f"v_lshlrev_b32 v{U+2*d}, 16, v{x+d}")
            a(f"v_and_b32 v{U+2*d+1}, s19, v{x+d}")
        if i==0:
            a("s_waitcnt lgkmcnt(0)"); stamp(7)
        for d in range(4): a(f"v_pk_mul_f32 v[{U+2*d}:{U+2*d+1}], v[{U+2*d}:{U+2*d+1}], v[{S+2*d}:{S+2*d+1}]")
        for d in range(4): a(f"v_cvt_pk_bf16_f32 v{x+d}, v{U+2*d}, v{U+2*d+1}")
        off=(i%3-1)*3072
        a(f"global_store_dwordx4 v1, v[{x}:{x+3}], s[10:11] offset:{off} {stf}")
        if i%3==2: a("v_add_u32 v1, s17, v1")
    def dump():
        if stamps:
            stamp(8); a("s_waitcnt vmcnt(0)"); stamp(9)
            a("s_waitcnt lgkmcnt(0)")
            a(f"s_mul_i32 s16, s2, 3\ns_add_u32 s16, s16, s3\ns_lshl_b32 s16, s16, 6\ns_add_u32 s16, s16, {STAMP}")
            a("s_mov_b64 exec, -1")
            a("v_mov_b32 v1, s16")
            for j in range(10): a(f"v_mov_b32 v{16+j}, s{60+2*j}")
            a("v_mov_b32 v26, s21\nv_mov_b32 v27, s25")
            a("s_mov_b64 exec, 1")
            for j in range(3): a(f"global_store_dwordx4 v1, v[{16+4*j}:{19+4*j}], s[14:15] offset:{16*j}")
    dump()
    if amp:
        stamp(8); a("s_waitcnt vmcnt(0)"); stamp(9)
        if amp[4] is not None: a(f"s_cmp_eq_u32 s2, {amp[4]}\ns_cbranch_scc0 L_end")
        a("s_memrealtime s[40:41]\ns_waitcnt lgkmcnt(0)")
        a(f"s_sub_u32 s16, s{60+2*amp[1]}, s{60+2*amp[0]}\ns_mul_i32 s16, s16, {amp[2]}\ns_lshr_b32 s16, s16, 4\ns_min_u32 s16, s16, 100000")
        if len(amp)>5: a(f"s_mov_b32 s16, {amp[5]}")
        a("L_amp:\ns_memrealtime s[42:43]\ns_waitcnt lgkmcnt(0)\ns_sub_u32 s17, s42, s40\ns_cmp_lt_u32 s17, s16\ns_cbranch_scc1 L_amp")
    a("L_end:\ns_endpgm")
    a("L_flagslow:")
    if f2at is not None:
        a("s_waitcnt vmcnt(0)\nv_mov_b32 v8, v11\ns_branch L_flagchk")
    a("L_flagloop:")
    a("global_load_dword v8, v7, s[12:13] sc1")
    a("s_sub_u32 s21, s21, 1")
    a("s_cbranch_scc1 L_flagok")
    a("s_waitcnt vmcnt(0)")
    a("L_flagchk:")
    if stamps: a("s_mov_b32 s25, s21")
    a("v_cmp_ne_u32 vcc, 0, v8")
    a("s_and_b32 s23, vcc_lo, s22")
    a("s_cmp_eq_u32 s23, s22")
    a("s_cbranch_scc0 L_flagloop")
    a("s_branch L_flagok")
    a("L_red:")
    a(f"s_mul_i32 s16, s2, {IS}")
    a("v_lshl_add_u32 v1, v0, 4, s16")
    for d in range(4): a(f"v_mov_b32 v{8+d}, -1")
    a("v_add_u32 v4, 3072, v1")
    a("v_add_u32 v6, 12288, v1")
    a(f"s_mul_i32 s17, s2, {OS}\ns_add_u32 s17, s17, {OUTB}")
    a("v_and_b32 v7, 7, v2")
    a("v_lshl_add_u32 v7, v7, 2, s17")
    a("s_lshl_b32 s18, s2, 2")
    a("v_mov_b32 v12, s18")
    a("s_waitcnt lgkmcnt(0)")
    for (vv,off) in ((4,-3072),(4,0),(4,3072),(6,-3072),(6,0)):
        a(f"global_store_dwordx4 v{vv}, v[8:11], s[14:15] offset:{off} sc1")
    a("s_mov_b64 exec, 0xff")
    a("global_store_dword v7, v8, s[14:15] sc1")
    a("s_mov_b64 exec, -1")
    a("s_waitcnt vmcnt(0)")
    a("s_barrier")
    a("s_cmp_eq_u32 s3, 0")
    a("s_cbranch_scc1 L_red0")
    a("v_subrev_u32 v4, 64, v0")
    a("v_mul_u32_u24 v4, 144, v4")
    a("global_load_dword v5, v4, s[6:7]\nglobal_load_dword v5, v4, s[6:7] offset:72")
    a("global_load_dword v5, v4, s[8:9]\nglobal_load_dword v5, v4, s[8:9] offset:72")
    a("s_endpgm")
    a("L_red0:")
    a("s_mov_b64 exec, 1")
    a("global_store_dword v12, v8, s[12:13] sc1")
    a("s_mov_b64 exec, -1")
    stamp(1)
    a("v_add_u32 v4, 4096, v1")
    a("v_add_u32 v6, 12288, v1")
    a(f"s_mov_b32 s21, {spin}")
    a(f"s_mov_b32 s20, {f2u(1.0/50176):#x}")
    Y=16
    def ld(i):
        vv,off=(4,1024*i-4096) if i<8 else (6,1024*i-12288)
        a(f"global_load_dwordx4 v[{Y+4*i}:{Y+4*i+3}], v{vv}, s[14:15] offset:{off} sc1")
    if prepoll:
        a("L_poll0:")
        ld(13)
        a("s_sub_u32 s21, s21, 1")
        a("s_cbranch_scc1 L_poll1")
        a("s_waitcnt vmcnt(0)")
        a(f"v_cmp_eq_u32 vcc, -1, v{Y+52}")
        a("s_cbranch_vccnz L_poll0")
        stamp(2)
    a("L_poll1:")
    for i in range(14): ld(i)
    a("s_sub_u32 s21, s21, 1")
    a("s_cbranch_scc1 L_poll1done")
    for p in range(7):
        ya=Y+8*p; yb=ya+4
        a(f"s_waitcnt vmcnt({12-2*p})")
        if p==0:
            a(f"v_max3_u32 v13, v{ya}, v{ya+1}, v{ya+2}")
            a(f"v_max3_u32 v14, v{yb}, v{yb+1}, v{yb+2}")
            a(f"v_max3_u32 v13, v13, v{ya+3}, v{yb+3}")
            a(f"v_add_f32 v8, v{ya}, v{yb}\nv_add_f32 v9, v{ya+1}, v{yb+1}")
            a(f"v_max_f32 v10, v{ya+2}, v{yb+2}\nv_max_f32 v11, v{ya+3}, v{yb+3}")
        else:
            a(f"v_max3_u32 v13, v13, v{ya}, v{ya+1}")
            a(f"v_max3_u32 v14, v14, v{ya+2}, v{ya+3}")
            a(f"v_max3_u32 v13, v13, v{yb}, v{yb+1}")
            a(f"v_max3_u32 v14, v14, v{yb+2}, v{yb+3}")
            a(f"v_pk_add_f32 v[{ya}:{ya+1}], v[{ya}:{ya+1}], v[{yb}:{yb+1}]")
            a(f"v_max3_f32 v10, v10, v{ya+2}, v{yb+2}\nv_max3_f32 v11, v11, v{ya+3}, v{yb+3}")
            a(f"v_pk_add_f32 v[8:9], v[8:9], v[{ya}:{ya+1}]")
    a("v_max_u32 v13, v13, v14")
    a("v_cmp_eq_u32 vcc, -1, v13")
    a("s_cbranch_vccnz L_poll1")
    a("L_poll1done:")
    stamp(3)
    a("v_permlane32_swap_b32 v8, v9")
    a("v_permlane32_swap_b32 v10, v11")
    a("v_add_f32 v8, v8, v9")
    a("v_max_f32 v10, v10, v11")
    a("s_nop 0")
    for rr in (4,8):
        a(f"v_add_f32_dpp v8, v8, v8 row_ror:{rr} row_mask:0xf bank_mask:0xf")
        a(f"v_max_f32_dpp v10, v10, v10 row_ror:{rr} row_mask:0xf bank_mask:0xf")
        if rr==4: a("s_nop 0")
    a("v_mov_b32 v9, v8\nv_mov_b32 v11, v10\ns_nop 0")
    a("v_permlane16_swap_b32 v8, v9")
    a("v_permlane16_swap_b32 v10, v11")
    a("v_add_f32 v8, v8, v9")
    a("v_max_f32 v10, v10, v11")
    a("v_mul_f32 v8, s20, v8")
    a("s_nop 1")
    a("v_mov_b32_dpp v8, v10 quad_perm:[0,1,2,3] row_mask:0xf bank_mask:0x2")
    a("v_mov_b32 v9, v8\ns_nop 1")
    a("v_permlane32_swap_b32 v8, v9")
    a("v_cvt_pk_bf16_f32 v8, v8, v9")
    a("v_min_u32 v8, -2, v8")
    a("s_mov_b64 exec, 0xff")
    a("global_store_dword v7, v8, s[14:15] sc1")
    if stamps:
        stamp(4)
        a(f"s_add_u32 s2, s2, {NP}")
        dump()
    a("s_endpgm")
    a("L_pad:")
    a(f".fill (9216+256-(L_pad-{NAME}))/4, 4, 0xbf810000")
    a(f""".section .rodata,"a"
.p2align 6
.amdhsa_kernel {NAME}
  .amdhsa_next_free_vgpr 256
  .amdhsa_next_free_sgpr 96
  .amdhsa_accum_offset 256
  .amdhsa_group_segment_fixed_size 0
  .amdhsa_kernarg_size 48
  .amdhsa_user_sgpr_count 2
  .amdhsa_user_sgpr_kernarg_segment_ptr 1
  .amdhsa_system_sgpr_workgroup_id_x 1
  .amdhsa_float_denorm_mode_32 3
.end_amdhsa_kernel""")
    return "\n".join(o)+"\n"
if __name__=="__main__":
    kw=eval("dict(%s)"%(sys.argv[2] if len(sys.argv)>2 else ""))
    open(sys.argv[1],"w").write(gen(**kw))
```

```python
import sys, struct
NAME="standalone__channel_attn_cbam__vision_kernel"
HEAD="""; Kernarg layout for this problem (48 bytes, ptrs only, base s[0:1]):
"""
def f2u(f): return struct.unpack("<I",struct.pack("<f",f))[0]

def gen(ldf="nt", stf="sc1", stamps=False, pf=True, spin=1<<20, amp=None, touch='', eat=6, mask1=True, mask2=True, REP=8, pub='', fb=100, RS=12288+128, diag='', cap2=0, PF=44):
    NP=224; R=32; L=28; GI=49152; SS=1664; OUTB=0x80000; EOFF=0xd0000; STAMP=0x100000
    KEY=0x9e3779b1
    XB=18432; LDS=XB+768; CB=0xa0000
    if REP==1: RS=0
    o=[]; a=o.append
    nst=[0]
    def stamp(i):
        if stamps: a(f"s_memrealtime s[{60+2*i}:{61+2*i}]")
        elif amp and i in amp[:2]: a(f"{amp[3]} s[{60+2*i}:{61+2*i}]")
    a(HEAD+f"; @launch grid=({NP+R},1,1) block=(192,1,1) lds={LDS}")
    a(f'.amdgcn_target "amdgcn-amd-amdhsa--gfx950"\n.text\n.globl {NAME}\n.p2align 8\n.type {NAME},@function\n{NAME}:')
    X=0x10
    W1=128
    W2=200
    T=224
    vOff=1; vLane=2
    stamp(0)
    a("s_load_dwordx4 s[4:7], s[0:1], 0")
    a("s_load_dwordx4 s[8:11], s[0:1], 16")
    a("s_load_dwordx4 s[12:15], s[0:1], 32")
    a(f"s_cmp_ge_u32 s2, {NP+R}")
    a("s_cbranch_scc1 L_end")
    npf=0
    if pf:
        a("s_getpc_b64 s[30:31]")
        a(f"v_mul_u32_u24 v4, {PF}, v0")
        a("global_load_dword v5, v4, s[30:31]")
        npf=1
    a("v_lshrrev_b32 v3, 6, v0")
    a("v_and_b32 v2, 63, v0")
    a("v_readfirstlane_b32 s3, v3")
    a(f"s_cmp_lt_u32 s2, {R}")
    a("s_cbranch_scc1 L_red")
    a(f"s_sub_u32 s2, s2, {R}")
    a("s_mul_i32 s16, s2, 86016")
    a("v_lshrrev_b32 v4, 3, v2")
    a("v_and_b32 v6, 7, v2")
    a("v_mul_u32_u24 v4, 384, v4")
    a("v_lshl_add_u32 v4, v3, 7, v4")
    a("v_lshl_add_u32 v4, v6, 4, v4")
    a("s_add_u32 s16, s16, 3072")
    a("s_movk_i32 s17, 9216")
    a("v_add_u32 v1, s16, v4")
    a("v_mov_b32 v4, v1")
    a(f"v_mov_b32 v7, {EOFF}")
    a("s_waitcnt lgkmcnt(0)")
    if eat=='s': a(f"s_load_dword s26, s[14:15], {EOFF}")
    for i in range(L):
        if i==eat: a("global_load_dword v8, v7, s[14:15]")
        off=(i%3-1)*3072
        a(f"global_load_dwordx4 v[{X+4*i}:{X+4*i+3}], v4, s[4:5] offset:{off} {ldf}")
        if i%3==2: a("v_add_u32 v4, s17, v4")
    stamp(1)
    A=T; ACC=T+28; ML=T+8; MH=T+12; TA=T+16; TB=T+20
    a("v_and_b32 v9, 1, v2")
    a("v_lshlrev_b32 v9, 4, v9")
    a("s_movk_i32 s18, 0x3f80")
    a("v_lshlrev_b32 v9, v9, s18")
    for d in range(4): a(f"v_mov_b32 v{A+d}, 0")
    for d in range(4): a(f"v_mov_b32_dpp v{A+d}, v9 quad_perm:[0,1,2,3] row_mask:0xf bank_mask:{1<<d:#x}")
    a("s_mov_b32 s19, 0xffff0000")
    a("v_lshrrev_b32 v9, 4, v2")
    a("v_and_b32 v10, 4, v2")
    a("v_add_u32 v9, v9, v10")
    a("v_lshl_add_u32 v9, v3, 3, v9")
    a("v_and_b32 v10, 3, v2")
    a("v_lshl_add_u32 v9, v9, 2, v10")
    a("s_and_b32 s27, s2, 7")
    a("s_lshr_b32 s20, s2, 3")
    a(f"s_mul_i32 s20, s20, {SS}")
    a(f"s_mul_i32 s28, s27, {GI}")
    a("s_add_u32 s20, s20, s28")
    a("v_lshl_add_u32 v9, v9, 4, s20")
    extra=0
    a("s_mov_b32 s22, 0x07060302")
    if 'o' in touch: a("global_load_dword v5, v1, s[10:11]"); extra+=1
    for p in range(L//2):
        i=2*p; xa=X+4*i; xb=xa+4
        a(f"s_waitcnt vmcnt({L-2-i+extra+(1 if eat!='s' and i+1<eat else 0)})")
        if p==0: stamp(2)
        if p==L//2-2:
            if eat=='s': a("s_waitcnt lgkmcnt(0)\nv_mov_b32 v8, s26")
            a(f"v_add_u32 v8, {KEY:#x}, v8")
        c = "0" if p==0 else f"v[{ACC}:{ACC+3}]"
        a(f"v_mfma_f32_16x16x32_bf16 v[{ACC}:{ACC+3}], v[{A}:{A+3}], v[{xa}:{xa+3}], {c}")
        for d in range(4): a(f"v_lshlrev_b32 v{TA+d}, 16, v{xa+d}")
        a(f"v_mfma_f32_16x16x32_bf16 v[{ACC}:{ACC+3}], v[{A}:{A+3}], v[{xb}:{xb+3}], v[{ACC}:{ACC+3}]")
        for d in range(4): a(f"v_lshlrev_b32 v{TB+d}, 16, v{xb+d}")
        for d in range(4):
            if p==0: a(f"v_max_f32 v{MH+d}, v{xa+d}, v{xb+d}")
            else: a(f"v_max3_f32 v{MH+d}, v{MH+d}, v{xa+d}, v{xb+d}")
        for d in range(4):
            if p==0: a(f"v_max_f32 v{ML+d}, v{TA+d}, v{TB+d}")
            else: a(f"v_max3_f32 v{ML+d}, v{ML+d}, v{TA+d}, v{TB+d}")
    stamp(3)
    a(f"v_permlane32_swap_b32 v{MH+0}, v{MH+2}")
    a(f"v_permlane32_swap_b32 v{MH+1}, v{MH+3}")
    a(f"v_permlane32_swap_b32 v{ML+0}, v{ML+2}")
    a(f"v_permlane32_swap_b32 v{ML+1}, v{ML+3}")
    a(f"v_max_f32 v{MH+0}, v{MH+0}, v{MH+2}")
    a(f"v_max_f32 v{MH+1}, v{MH+1}, v{MH+3}")
    a(f"v_max_f32 v{ML+0}, v{ML+0}, v{ML+2}")
    a(f"v_max_f32 v{ML+1}, v{ML+1}, v{ML+3}")
    a(f"v_add_f32_dpp v{ACC+0}, v{ACC+0}, v{ACC+0} row_ror:8 row_mask:0xf bank_mask:0xf")
    a(f"v_permlane16_swap_b32 v{MH+0}, v{MH+1}")
    a(f"v_permlane16_swap_b32 v{ML+0}, v{ML+1}")
    a(f"v_add_f32_dpp v{ACC+1}, v{ACC+1}, v{ACC+1} row_ror:8 row_mask:0xf bank_mask:0xf")
    a(f"v_max_f32 v{MH+0}, v{MH+0}, v{MH+1}")
    a(f"v_max_f32 v{ML+0}, v{ML+0}, v{ML+1}")
    a(f"v_mov_b32 v{ACC+3}, v8")
    a(f"v_max_f32_dpp v{MH+0}, v{MH+0}, v{MH+0} row_ror:8 row_mask:0xf bank_mask:0xf")
    a(f"v_max_f32_dpp v{ML+0}, v{ML+0}, v{ML+0} row_ror:8 row_mask:0xf bank_mask:0xf")
    a("s_mov_b32 exec_lo, 0x00ff00ff\ns_mov_b32 exec_hi, 0x00ff00ff")
    a(f"v_perm_b32 v{ACC+2}, v{MH+0}, v{ML+0}, s22")
    a(f"global_store_dwordx4 v9, v[{ACC}:{ACC+3}], s[14:15] {pub}")
    a("s_mov_b64 exec, -1")
    stamp(4)
    S=T; U=T+8
    a("s_lshl_b32 s27, s27, 12")
    a(f"s_add_u32 s27, s27, {CB}")
    a("v_lshl_add_u32 v12, v0, 2, s27")
    a("v_and_b32 v11, 0xffff, v8")
    a(f"s_mov_b32 s21, {spin}")
    for d in range(4):
        a(f"v_lshlrev_b32 v{U+2*d}, 16, v{X+d}")
        a(f"v_and_b32 v{U+2*d+1}, s19, v{X+d}")
    stamp(5)
    a("L_poll3:")
    a("global_load_dword v10, v12, s[14:15] sc1")
    a(f"s_cmp_eq_u32 s21, {spin-fb}")
    a("s_cbranch_scc1 L_fb")
    a("L_fbdone:")
    a("s_sub_u32 s21, s21, 1")
    a("s_cbranch_scc1 L_poll3done")
    a("s_waitcnt vmcnt(0)")
    a("v_cmp_ne_u16 vcc, v10, v11")
    a("s_cbranch_vccnz L_poll3")
    a("L_poll3done:")
    stamp(6)
    a(f"v_xor_b32 v{S}, v10, v11")
    a(f"v_xor_b32 v{S+4}, v10, v11")
    a(f"v_xor_b32_dpp v{S}, v10, v11 row_ror:8 row_mask:0xf bank_mask:0xc")
    a(f"v_xor_b32_dpp v{S+4}, v10, v11 row_ror:8 row_mask:0xf bank_mask:0x3")
    a(f"v_mov_b32 v{S+1}, v{S}")
    a(f"v_mov_b32 v{S+5}, v{S+4}")
    a("s_nop 0")
    a(f"v_permlane16_swap_b32 v{S}, v{S+1}")
    a(f"v_permlane16_swap_b32 v{S+4}, v{S+5}")
    a(f"v_mov_b64 v[{S+2}:{S+3}], v[{S}:{S+1}]")
    a(f"v_mov_b64 v[{S+6}:{S+7}], v[{S+4}:{S+5}]")
    a("s_nop 0")
    for k in (0,1,4,5): a(f"v_permlane32_swap_b32 v{S+k}, v{S+k+2}")
    stamp(7)
    for i in range(L):
        x=X+4*i
        for d in range(4):
            if i==0: break
            a(f"v_lshlrev_b32 v{U+2*d}, 16, v{x+d}")
            a(f"v_and_b32 v{U+2*d+1}, s19, v{x+d}")
        for d in range(4): a(f"v_pk_mul_f32 v[{U+2*d}:{U+2*d+1}], v[{U+2*d}:{U+2*d+1}], v[{S+2*d}:{S+2*d+1}]")
        for d in range(4): a(f"v_cvt_pk_bf16_f32 v{x+d}, v{U+2*d}, v{U+2*d+1}")
        off=(i%3-1)*3072
        a(f"global_store_dwordx4 v1, v[{x}:{x+3}], s[10:11] offset:{off} {stf}")
        if i%3==2: a("v_add_u32 v1, s17, v1")
    def dump():
        if stamps:
            stamp(8); a("s_waitcnt vmcnt(0)"); stamp(9)
            a("s_waitcnt lgkmcnt(0)")
            a(f"s_mul_i32 s16, s2, 3\ns_add_u32 s16, s16, s3\ns_lshl_b32 s16, s16, 6\ns_add_u32 s16, s16, {STAMP}")
            a("s_mov_b64 exec, -1")
            a("v_mov_b32 v1, s16")
            for j in range(10): a(f"v_mov_b32 v{16+j}, s{60+2*j}")
            a("v_mov_b32 v26, s21\nv_mov_b32 v27, s25")
            a("s_mov_b64 exec, 1")
            for j in range(3): a(f"global_store_dwordx4 v1, v[{16+4*j}:{19+4*j}], s[14:15] offset:{16*j}")
    dump()
    if amp:
        stamp(8); a("s_waitcnt vmcnt(0)"); stamp(9)
        if amp[4] is not None: a(f"s_cmp_eq_u32 s2, {amp[4]}\ns_cbranch_scc0 L_end")
        a("s_memrealtime s[40:41]\ns_waitcnt lgkmcnt(0)")
        a(f"s_sub_u32 s16, s{60+2*amp[1]}, s{60+2*amp[0]}\ns_mul_i32 s16, s16, {amp[2]}\ns_lshr_b32 s16, s16, 4\ns_min_u32 s16, s16, 100000")
        if len(amp)>5: a(f"s_mov_b32 s16, {amp[5]}")
        a("L_amp:\ns_memrealtime s[42:43]\ns_waitcnt lgkmcnt(0)\ns_sub_u32 s17, s42, s40\ns_cmp_lt_u32 s17, s16\ns_cbranch_scc1 L_amp")
    a("L_end:\ns_endpgm")
    a("L_fb:")
    a("s_waitcnt vmcnt(0)")
    a("s_mov_b32 exec_lo, 0x00ff00ff\ns_mov_b32 exec_hi, 0x00ff00ff")
    a(f"global_store_dwordx4 v9, v[{ACC}:{ACC+3}], s[14:15] sc1")
    a("s_mov_b64 exec, -1")
    a("v_add_u32 v12, 2048, v12")
    a("s_branch L_fbdone")
    def redn(Y,n,Z):
        V=Z+4
        a(f"v_pk_add_f32 v[{Z}:{Z+1}], v[{Y}:{Y+1}], v[{Y+4}:{Y+5}]")
        a(f"v_pk_add_f32 v[{V}:{V+1}], v[{Y+8}:{Y+9}], v[{Y+12}:{Y+13}]")
        for i in range(n): a(f"v_lshlrev_b32 v{V+2+i}, 16, v{Y+4*i+2}")
        if n==7:
            a(f"v_pk_add_f32 v[{Z}:{Z+1}], v[{Z}:{Z+1}], v[{Y+16}:{Y+17}]")
            a(f"v_pk_add_f32 v[{V}:{V+1}], v[{V}:{V+1}], v[{Y+20}:{Y+21}]")
        a(f"v_max3_f32 v{Z+2}, v{Y+2}, v{Y+6}, v{Y+10}")
        a(f"v_max3_f32 v{Z+3}, v{V+2}, v{V+3}, v{V+4}")
        if n==7:
            a(f"v_pk_add_f32 v[{Z}:{Z+1}], v[{Z}:{Z+1}], v[{Y+24}:{Y+25}]")
            a(f"v_max3_f32 v{Z+2}, v{Z+2}, v{Y+14}, v{Y+18}")
            a(f"v_max3_f32 v{Z+3}, v{Z+3}, v{V+5}, v{V+6}")
        a(f"v_pk_add_f32 v[{Z}:{Z+1}], v[{Z}:{Z+1}], v[{V}:{V+1}]")
        if n==7:
            a(f"v_max3_f32 v{Z+2}, v{Z+2}, v{Y+22}, v{Y+26}")
            a(f"v_max3_f32 v{Z+3}, v{Z+3}, v{V+7}, v{V+8}")
        else:
            a(f"v_max_f32 v{Z+2}, v{Z+2}, v{Y+14}")
            a(f"v_max_f32 v{Z+3}, v{Z+3}, v{V+5}")
        a(f"v_permlane32_swap_b32 v{Z}, v{Z+1}")
    a("L_red:")
    a(f"v_mov_b32 v39, {EOFF}")
    a("s_and_b32 s27, s2, 7")
    a("s_mov_b32 s22, 0x07060302")
    a("s_waitcnt lgkmcnt(0)")
    a("global_load_dword v15, v39, s[14:15]")
    a("s_cmp_lt_u32 s2, 8")
    a("s_cbranch_scc1 L_mlp")
    a("s_cmp_eq_u32 s3, 2")
    a("s_cbranch_scc1 L_end")
    a("s_lshr_b32 s16, s2, 3")
    a("s_lshl_b32 s16, s16, 1")
    a("s_add_u32 s16, s16, s3")
    a("s_lshl_b32 s16, s16, 8")
    a(f"s_mul_i32 s17, s27, {GI}")
    a("s_add_u32 s17, s17, s16")
    a(f"s_add_u32 s17, s17, {2*SS-512}")
    a("s_mul_i32 s18, s27, 1536")
    a("s_add_u32 s18, s18, s16")
    a(f"s_add_u32 s18, s18, {OUTB-512}")
    a("v_lshrrev_b32 v4, 4, v2")
    a("v_and_b32 v6, 15, v2")
    a("v_lshl_add_u32 v8, v6, 4, s17")
    a("v_lshl_add_u32 v7, v6, 4, s18")
    a(f"v_mul_u32_u24 v6, {SS}, v4")
    a("v_add_u32 v8, v8, v6")
    a(f"v_mul_u32_u24 v6, {RS}, v4")
    a("v_add_u32 v7, v7, v6")
    a(f"v_add_u32 v6, {4*RS}, v7")
    for i in range(1,4): a(f"v_add_u32 v{8+i}, {8*SS*i}, v8")
    a(f"s_mov_b32 s21, {spin}")
    Y=16; Z=48
    def ld1(i): a(f"global_load_dwordx4 v[{Y+4*i}:{Y+4*i+3}], v{8+i//2}, s[14:15] offset:{(2*(i&1)-1)*2*SS} sc1")
    for i in range(7): ld1(i)
    a("s_waitcnt vmcnt(7)")
    a(f"v_add_u32 v15, {KEY:#x}, v15")
    stamp(1)
    a("s_branch L_chk1")
    a("L_poll1:")
    for i in range(7):
        if mask1: a(f"s_mov_b64 exec, s[{40+2*i}:{41+2*i}]")
        ld1(i)
    a("s_mov_b64 exec, -1")
    a("s_sub_u32 s21, s21, 1")
    a("s_cbranch_scc1 L_poll1done")
    a("L_chk1:")
    for i in range(7):
        a(f"s_waitcnt vmcnt({6-i})")
        a(f"v_cmp_ne_u32 s[{40+2*i}:{41+2*i}], v15, v{Y+4*i+3}")
        if i==2: a("s_or_b64 s[54:55], s[40:41], s[42:43]")
        if i>2: a(f"s_or_b64 s[54:55], s[54:55], s[{38+2*i}:{39+2*i}]")
    a("s_or_b64 s[54:55], s[54:55], s[52:53]")
    a("s_cbranch_scc1 L_poll1")
    a("L_poll1done:")
    stamp(2)
    redn(Y,7,Z)
    a(f"v_add_f32 v12, v{Z}, v{Z+1}")
    a(f"v_permlane32_swap_b32 v{Z+3}, v{Z+2}")
    a(f"v_add_f32 v13, v{Z}, v{Z+1}")
    a(f"v_max_f32 v8, v{Z+2}, v{Z+3}")
    a(f"v_max_f32 v9, v{Z+2}, v{Z+3}")
    a("v_permlane16_swap_b32 v12, v13")
    a("v_add_f32 v12, v12, v13")
    a("v_permlane16_swap_b32 v8, v9")
    a("v_mov_b32 v13, v12")
    a("v_max_f32 v10, v8, v9")
    a("v_max_f32 v11, v8, v9")
    a("v_permlane32_swap_b32 v12, v13")
    a("v_bitop3_b32 v15, v12, v13, v15 bitop3:0x96" if cap2 else "s_nop 0")
    a("v_permlane32_swap_b32 v10, v11")
    if REP==1: a("s_mov_b64 exec, 0xffff")
    a("v_perm_b32 v14, v11, v10, s22")
    if cap2: a("v_xor_b32 v15, v15, v14")
    a("global_store_dwordx4 v7, v[12:15], s[14:15] sc1")
    if REP>1: a("global_store_dwordx4 v6, v[12:15], s[14:15] sc1")
    if stamps:
        stamp(4); a("s_branch L_nobump")
    else: a("s_endpgm")
    a("L_mlp:")
    G=T; D1=T+20; H=W1; RW=48
    a("v_and_b32 v12, 31, v2")
    a("v_lshl_add_u32 v12, v3, 5, v12")
    a("v_lshrrev_b32 v14, 5, v2")
    a("v_mul_u32_u24 v14, 384, v14")
    a("v_lshl_add_u32 v34, v12, 2, v14")
    a("v_add_lshl_u32 v12, v12, v14, 4")
    a(f"s_mul_i32 s28, s27, {RS}")
    a(f"s_add_u32 s28, s28, {OUTB+3072}")
    a("v_add_u32 v36, s28, v12")
    a("s_mul_i32 s24, s3, 6144")
    a("v_lshl_add_u32 v12, v2, 4, s24")
    a("s_mov_b32 m0, s24")
    a("v_add_u32 v13, 3072, v12")
    for k in range(3): a(f"global_load_lds_dwordx4 v12, s[6:7] offset:{1024*k}")
    a(f"s_add_u32 m0, m0, 3072")
    a("v_lshrrev_b32 v14, 4, v2")
    for k in range(3): a(f"global_load_lds_dwordx4 v13, s[6:7] offset:{1024*k}")
    a("v_mul_u32_u24 v12, 1536, v14")
    a("v_lshl_add_u32 v12, v3, 7, v12")
    a("v_and_b32 v13, 7, v2")
    a("v_lshl_add_u32 v12, v13, 4, v12")
    a("v_and_b32 v13, 8, v2")
    a("v_add_u32 v12, v12, v13")
    for u in range(3):
        for i in range(4): a(f"global_load_dwordx2 v[{RW+8*u+2*i}:{RW+8*u+2*i+1}], v12, s[8:9] offset:{384*i}")
        if u<2: a("v_add_u32 v12, 6144, v12")
    a("s_lshl_b32 s28, s27, 12")
    a(f"s_add_u32 s28, s28, {CB}")
    a("v_lshl_add_u32 v37, v0, 2, s28")
    a("global_load_dword v5, v37, s[14:15] sc1")
    for i in range(4): a(f"global_load_dwordx4 v[{G+4*i}:{G+4*i+3}], v36, s[14:15] offset:{1536*i-3072} sc1")
    a("v_bfe_u32 v12, v2, 3, 1")
    a("v_bfe_u32 v13, v2, 2, 1")
    a("v_lshl_add_u32 v12, v12, 3, v13")
    a("v_lshl_add_u32 v12, v14, 1, v12")
    a("v_mul_u32_u24 v12, 96, v12")
    a("v_and_b32 v13, 3, v2")
    a("v_lshl_add_u32 v32, v13, 3, v12")
    a("v_and_b32 v12, 1, v2")
    a("v_mul_u32_u24 v12, 384, v12")
    a("v_lshl_add_u32 v35, v14, 4, v12")
    a("s_mov_b32 s23, 0x05040100")
    a(f"s_mov_b32 s20, {f2u(1.0/50176):#x}")
    a("s_mov_b32 s19, 0xffff0000")
    a("v_lshl_add_u32 v12, s27, 2, v39")
    a("v_lshl_add_u32 v33, v2, 2, v39")
    a("s_waitcnt vmcnt(5)")
    a("s_barrier")
    a(f"v_add_u32 v15, {KEY:#x}, v15")
    a("s_mov_b64 exec, 1")
    a("global_store_dword v12, v15, s[14:15] offset:256 sc1")
    a("s_mov_b64 exec, -1")
    for s in range(6):
        for t in range(3):
            for h in range(2):
                r=W1+(s*3+t)*4+2*h
                a(f"ds_read_b64_tr_b16 v[{r}:{r+1}], v32 offset:{(32*s+16*h)*96+32*t}")
    for t in range(4):
        for u in range(3):
            for j in range(2):
                a(f"v_perm_b32 v{W2+6*t+2*u+j}, v{RW+8*u+4*j+2+(t>>1)}, v{RW+8*u+4*j+(t>>1)}, s{22 if t&1 else 23}")
    a("s_waitcnt vmcnt(1)")
    a("v_and_b32 v38, 0xffff, v15")
    stamp(1)
    a(f"s_mov_b32 s21, {spin}")
    for i in range(4): a(f"s_mov_b64 s[{40+2*i}:{41+2*i}], -1")
    a("L_poll2:")
    for i in range(4):
        if mask2: a(f"s_mov_b64 exec, s[{40+2*i}:{41+2*i}]")
        a(f"global_load_dwordx4 v[{G+4*i}:{G+4*i+3}], v36, s[14:15] offset:{1536*i-3072} sc1")
    if mask2: a("s_mov_b64 exec, -1")
    a("s_sub_u32 s21, s21, 1")
    a("s_cbranch_scc1 L_poll2done")
    for i in range(4):
        if cap2:
            if i==0: a(f"s_waitcnt vmcnt({cap2})")
            a(f"v_bitop3_b32 v8, v{G+4*i}, v{G+4*i+1}, v{G+4*i+2} bitop3:0x96")
            a(f"v_xor_b32 v9, v15, v{G+4*i+3}")
            a(f"v_cmp_ne_u32 s[{40+2*i}:{41+2*i}], v8, v9")
        else:
            a(f"s_waitcnt vmcnt({3-i})")
            a(f"v_cmp_ne_u32 s[{40+2*i}:{41+2*i}], v15, v{G+4*i+3}")
        if i==2: a("s_or_b64 s[52:53], s[40:41], s[42:43]")
        if i==3: a("s_or_b64 s[52:53], s[52:53], s[44:45]")
    a("s_or_b64 s[52:53], s[52:53], s[46:47]")
    a("s_cbranch_scc1 L_poll2")
    a("L_poll2done:")
    stamp(5)
    redn(G,4,16); G=16
    a(f"v_add_f32 v{G}, v{G}, v{G+1}")
    a(f"v_permlane32_swap_b32 v{G+3}, v{G+2}")
    a(f"v_max_f32 v{G+2}, v{G+2}, v{G+3}")
    a(f"v_mul_f32 v{G}, s20, v{G}")
    a(f"v_and_b32 v{G+2}, s19, v{G+2}")
    a("s_nop 1")
    a(f"v_permlane32_swap_b32 v{G}, v{G+2}")
    a(f"v_cvt_pk_bf16_f32 v{G}, v{G}, v{G+2}")
    a(f"ds_write_b32 v34, v{G} offset:{XB}")
    a("s_waitcnt lgkmcnt(0)")
    a("s_barrier")
    stamp(6)
    B=[40,44,48,52,56,60]
    for s in range(6): a(f"ds_read_b128 v[{B[s]}:{B[s]+3}], v35 offset:{XB+64*s}")
    for s in range(6):
        a(f"s_waitcnt lgkmcnt({5-s})")
        for t in range(3):
            w=W1+(s*3+t)*4; d=D1+4*t
            c="0" if s==0 else f"v[{d}:{d+3}]"
            a(f"v_mfma_f32_16x16x32_bf16 v[{d}:{d+3}], v[{w}:{w+3}], v[{B[s]}:{B[s]+3}], {c}")
    a("s_nop 5")
    for t in range(3):
        for i in range(4): a(f"v_maximum3_f32 v{D1+4*t+i}, v{D1+4*t+i}, 0, 0")
        a(f"v_cvt_pk_bf16_f32 v{H+2*t}, v{D1+4*t}, v{D1+4*t+1}")
        a(f"v_cvt_pk_bf16_f32 v{H+2*t+1}, v{D1+4*t+2}, v{D1+4*t+3}")
    D2=W1+8
    a("s_nop 1")
    for t in range(4):
        a(f"v_mfma_f32_16x16x32_bf16 v[{D2+4*t}:{D2+4*t+3}], v[{H}:{H+3}], v[{W2+6*t}:{W2+6*t+3}], 0")
    for t in range(4):
        a(f"v_mfma_f32_16x16x16_bf16 v[{D2+4*t}:{D2+4*t+3}], v[{H+4}:{H+5}], v[{W2+6*t+4}:{W2+6*t+5}], v[{D2+4*t}:{D2+4*t+3}]")
    a("s_nop 4")
    P=W1+24
    for t in range(4): a(f"v_cvt_pk_bf16_f32 v{P+t}, v{D2+4*t}, v{D2+4*t+1}")
    a(f"v_permlane16_swap_b32 v{P}, v{P+1}")
    a("s_nop 0")
    a(f"v_permlane16_swap_b32 v{P+2}, v{P+3}")
    a("s_nop 1")
    a(f"v_permlane32_swap_b32 v{P}, v{P+2}")
    a(f"v_lshlrev_b32 v{P+1}, 16, v{P}")
    a(f"v_and_b32 v{P}, s19, v{P}")
    a(f"v_add_f32 v{P}, v{P}, v{P+1}")
    a(f"v_cvt_pk_bf16_f32 v{P}, v{P}, v{P}")
    a(f"v_and_b32 v{P}, s19, v{P}")
    a(f"v_mul_f32 v{P}, {f2u(-1.4426950408889634):#x}, v{P}")
    a(f"v_exp_f32 v{P}, v{P}")
    a("s_nop 0")
    a(f"v_add_f32 v{P}, 1.0, v{P}")
    a(f"v_rcp_f32 v{P}, v{P}")
    a("s_nop 0")
    a(f"v_cvt_pk_bf16_f32 v{P}, v{P}, v{P}")
    a(f"v_and_or_b32 v{P}, v{P}, s19, v38")
    a(f"global_store_dword v37, v{P}, s[14:15]")
    stamp(7)
    a(f"global_store_dword v37, v{P}, s[14:15] offset:2048 sc1")
    a("s_or_b32 s23, s2, s3")
    a("s_cbranch_scc1 L_nobump")
    a(f"s_mov_b32 s25, {spin}")
    a("s_mov_b64 exec, 0xff")
    a("L_tok:")
    a("global_load_dword v12, v33, s[14:15] offset:256 sc1")
    a("s_sub_u32 s25, s25, 1")
    a("s_cbranch_scc1 L_tokdone")
    a("s_waitcnt vmcnt(0)")
    a("v_cmp_ne_u32 vcc, v12, v15")
    a("s_cbranch_vccnz L_tok")
    a("L_tokdone:")
    a("s_mov_b64 exec, 1")
    a("global_store_dword v39, v15, s[14:15] sc1")
    a("L_nobump:")
    if stamps:
        a(f"s_add_u32 s2, s2, {NP}")
        dump()
    a("s_endpgm")
    a("L_pad:")
    a(f".fill ({192*PF}+256-(L_pad-{NAME}))/4, 4, 0xbf810000")
    a(f""".section .rodata,"a"
.p2align 6
.amdhsa_kernel {NAME}
  .amdhsa_next_free_vgpr 256
  .amdhsa_next_free_sgpr 96
  .amdhsa_accum_offset 256
  .amdhsa_group_segment_fixed_size 0
  .amdhsa_kernarg_size 48
  .amdhsa_user_sgpr_count 2
  .amdhsa_user_sgpr_kernarg_segment_ptr 1
  .amdhsa_system_sgpr_workgroup_id_x 1
  .amdhsa_float_denorm_mode_32 3
.end_amdhsa_kernel""")
    return "\n".join(o)+"\n"
if __name__=="__main__":
    kw=eval("dict(%s)"%(sys.argv[2] if len(sys.argv)>2 else ""))
    open(sys.argv[1],"w").write(gen(**kw))
```

```python
import sys, struct
NAME="standalone__channel_attn_cbam__vision_kernel"
HEAD="""; Kernarg layout for this problem (48 bytes, ptrs only, base s[0:1]):
"""
def f2u(f): return struct.unpack("<I",struct.pack("<f",f))[0]

def gen(ldf="nt", stf="sc1", stamps=False, pf=True, spin=1<<20, amp=None, touch='', eat=6, mask1=True, mask2=True, REP=8, pub='', fb=100, RS=12288+128, diag='', cap2=0, PF=44):
    NP=224; R=32; L=28; GI=49152; SS=1664; OUTB=0x80000; EOFF=0xd0000; STAMP=0x100000
    KEY=0x9e3779b1
    XB=18432; LDS=XB+768; CB=0xa0000
    if REP==1: RS=0
    o=[]; a=o.append
    nst=[0]
    def stamp(i):
        if stamps: a(f"s_memrealtime s[{60+2*i}:{61+2*i}]")
        elif amp and i in amp[:2]: a(f"{amp[3]} s[{60+2*i}:{61+2*i}]")
    a(HEAD+f"; @launch grid=({NP+R},1,1) block=(192,1,1) lds={LDS}")
    a(f'.amdgcn_target "amdgcn-amd-amdhsa--gfx950"\n.text\n.globl {NAME}\n.p2align 8\n.type {NAME},@function\n{NAME}:')
    X=0x10
    W1=128
    W2=200
    T=224
    vOff=1; vLane=2
    stamp(0)
    a("s_load_dwordx4 s[4:7], s[0:1], 0")
    a("s_load_dwordx4 s[8:11], s[0:1], 16")
    a("s_load_dwordx4 s[12:15], s[0:1], 32")
    a(f"s_cmp_ge_u32 s2, {NP+R}")
    a("s_cbranch_scc1 L_end")
    npf=0
    if pf:
        a("s_getpc_b64 s[30:31]")
        a(f"v_mul_u32_u24 v4, {PF}, v0")
        a("global_load_dword v5, v4, s[30:31]")
        npf=1
    a("v_lshrrev_b32 v3, 6, v0")
    a("v_and_b32 v2, 63, v0")
    a("v_readfirstlane_b32 s3, v3")
    a(f"s_cmp_lt_u32 s2, {R}")
    a("s_cbranch_scc1 L_red")
    a(f"s_sub_u32 s2, s2, {R}")
    a("s_mul_i32 s16, s2, 86016")
    a("v_lshrrev_b32 v4, 3, v2")
    a("v_and_b32 v6, 7, v2")
    a("v_mul_u32_u24 v4, 384, v4")
    a("v_lshl_add_u32 v4, v3, 7, v4")
    a("v_lshl_add_u32 v4, v6, 4, v4")
    a("s_add_u32 s16, s16, 3072")
    a("s_movk_i32 s17, 9216")
    a("v_add_u32 v1, s16, v4")
    a("v_mov_b32 v4, v1")
    a(f"v_mov_b32 v7, {EOFF}")
    a("s_waitcnt lgkmcnt(0)")
    if 'k' in diag: stamp(1)
    if eat=='s': a(f"s_load_dword s26, s[14:15], {EOFF}")
    for i in range(L):
        if 'k' in diag and i==5:
            stamp(2)
            if 'f' in diag: a("s_waitcnt vmcnt(4)"); stamp(5)
        if i==eat: a("global_load_dword v8, v7, s[14:15]")
        off=(i%3-1)*3072
        a(f"global_load_dwordx4 v[{X+4*i}:{X+4*i+3}], v4, s[4:5] offset:{off} {ldf}")
        if i%3==2: a("v_add_u32 v4, s17, v4")
    if 'k' not in diag: stamp(1)
    A=T; ACC=T+28; ML=T+8; MH=T+12; TA=T+16; TB=T+20
    a("v_and_b32 v9, 1, v2")
    a("v_lshlrev_b32 v9, 4, v9")
    a("s_movk_i32 s18, 0x3f80")
    a("v_lshlrev_b32 v9, v9, s18")
    for d in range(4): a(f"v_mov_b32 v{A+d}, 0")
    for d in range(4): a(f"v_mov_b32_dpp v{A+d}, v9 quad_perm:[0,1,2,3] row_mask:0xf bank_mask:{1<<d:#x}")
    a("s_mov_b32 s19, 0xffff0000")
    a("v_lshrrev_b32 v9, 4, v2")
    a("v_and_b32 v10, 4, v2")
    a("v_add_u32 v9, v9, v10")
    a("v_lshl_add_u32 v9, v3, 3, v9")
    a("v_and_b32 v10, 3, v2")
    a("v_lshl_add_u32 v9, v9, 2, v10")
    a("s_and_b32 s27, s2, 7")
    a("s_lshr_b32 s20, s2, 3")
    a(f"s_mul_i32 s20, s20, {SS}")
    a(f"s_mul_i32 s28, s27, {GI}")
    a("s_add_u32 s20, s20, s28")
    a("v_lshl_add_u32 v9, v9, 4, s20")
    extra=0
    a("s_mov_b32 s22, 0x07060302")
    if 'o' in touch: a("global_load_dword v5, v1, s[10:11]"); extra+=1
    for p in range(L//2):
        i=2*p; xa=X+4*i; xb=xa+4
        a(f"s_waitcnt vmcnt({L-2-i+extra+(1 if eat!='s' and i+1<eat else 0)})")
        if p==0 and 'k' not in diag: stamp(2)
        if p==L//2-2:
            if eat=='s': a("s_waitcnt lgkmcnt(0)\nv_mov_b32 v8, s26")
            a(f"v_add_u32 v8, {KEY:#x}, v8")
        c = "0" if p==0 else f"v[{ACC}:{ACC+3}]"
        a(f"v_mfma_f32_16x16x32_bf16 v[{ACC}:{ACC+3}], v[{A}:{A+3}], v[{xa}:{xa+3}], {c}")
        for d in range(4): a(f"v_lshlrev_b32 v{TA+d}, 16, v{xa+d}")
        a(f"v_mfma_f32_16x16x32_bf16 v[{ACC}:{ACC+3}], v[{A}:{A+3}], v[{xb}:{xb+3}], v[{ACC}:{ACC+3}]")
        for d in range(4): a(f"v_lshlrev_b32 v{TB+d}, 16, v{xb+d}")
        for d in range(4):
            if p==0: a(f"v_max_f32 v{MH+d}, v{xa+d}, v{xb+d}")
            else: a(f"v_max3_f32 v{MH+d}, v{MH+d}, v{xa+d}, v{xb+d}")
        for d in range(4):
            if p==0: a(f"v_max_f32 v{ML+d}, v{TA+d}, v{TB+d}")
            else: a(f"v_max3_f32 v{ML+d}, v{ML+d}, v{TA+d}, v{TB+d}")
    stamp(3)
    a(f"v_permlane32_swap_b32 v{MH+0}, v{MH+2}")
    a(f"v_permlane32_swap_b32 v{MH+1}, v{MH+3}")
    a(f"v_permlane32_swap_b32 v{ML+0}, v{ML+2}")
    a(f"v_permlane32_swap_b32 v{ML+1}, v{ML+3}")
    a(f"v_max_f32 v{MH+0}, v{MH+0}, v{MH+2}")
    a(f"v_max_f32 v{MH+1}, v{MH+1}, v{MH+3}")
    a(f"v_max_f32 v{ML+0}, v{ML+0}, v{ML+2}")
    a(f"v_max_f32 v{ML+1}, v{ML+1}, v{ML+3}")
    a(f"v_add_f32_dpp v{ACC+0}, v{ACC+0}, v{ACC+0} row_ror:8 row_mask:0xf bank_mask:0xf")
    a(f"v_permlane16_swap_b32 v{MH+0}, v{MH+1}")
    a(f"v_permlane16_swap_b32 v{ML+0}, v{ML+1}")
    a(f"v_add_f32_dpp v{ACC+1}, v{ACC+1}, v{ACC+1} row_ror:8 row_mask:0xf bank_mask:0xf")
    a(f"v_max_f32 v{MH+0}, v{MH+0}, v{MH+1}")
    a(f"v_max_f32 v{ML+0}, v{ML+0}, v{ML+1}")
    a(f"v_mov_b32 v{ACC+3}, v8")
    a(f"v_max_f32_dpp v{MH+0}, v{MH+0}, v{MH+0} row_ror:8 row_mask:0xf bank_mask:0xf")
    a(f"v_max_f32_dpp v{ML+0}, v{ML+0}, v{ML+0} row_ror:8 row_mask:0xf bank_mask:0xf")
    a("s_mov_b32 exec_lo, 0x00ff00ff\ns_mov_b32 exec_hi, 0x00ff00ff")
    a(f"v_perm_b32 v{ACC+2}, v{MH+0}, v{ML+0}, s22")
    a(f"global_store_dwordx4 v9, v[{ACC}:{ACC+3}], s[14:15] {pub}")
    a("s_mov_b64 exec, -1")
    stamp(4)
    S=T; U=T+8
    a("s_lshl_b32 s27, s27, 12")
    a(f"s_add_u32 s27, s27, {CB}")
    a("v_lshl_add_u32 v12, v0, 2, s27")
    a("v_and_b32 v11, 0xffff, v8")
    a(f"s_mov_b32 s21, {spin}")
    for d in range(4):
        a(f"v_lshlrev_b32 v{U+2*d}, 16, v{X+d}")
        a(f"v_and_b32 v{U+2*d+1}, s19, v{X+d}")
    if 'f' not in diag: stamp(5)
    a("L_poll3:")
    a("global_load_dword v10, v12, s[14:15] sc1")
    a(f"s_cmp_eq_u32 s21, {spin-fb}")
    a("s_cbranch_scc1 L_fb")
    a("L_fbdone:")
    a("s_sub_u32 s21, s21, 1")
    a("s_cbranch_scc1 L_poll3done")
    a("s_waitcnt vmcnt(0)")
    a("v_cmp_ne_u16 vcc, v10, v11")
    a("s_cbranch_vccnz L_poll3")
    a("L_poll3done:")
    stamp(6)
    a(f"v_xor_b32 v{S}, v10, v11")
    a(f"v_xor_b32 v{S+4}, v10, v11")
    a(f"v_xor_b32_dpp v{S}, v10, v11 row_ror:8 row_mask:0xf bank_mask:0xc")
    a(f"v_xor_b32_dpp v{S+4}, v10, v11 row_ror:8 row_mask:0xf bank_mask:0x3")
    a(f"v_mov_b32 v{S+1}, v{S}")
    a(f"v_mov_b32 v{S+5}, v{S+4}")
    a("s_nop 0")
    a(f"v_permlane16_swap_b32 v{S}, v{S+1}")
    a(f"v_permlane16_swap_b32 v{S+4}, v{S+5}")
    a(f"v_mov_b64 v[{S+2}:{S+3}], v[{S}:{S+1}]")
    a(f"v_mov_b64 v[{S+6}:{S+7}], v[{S+4}:{S+5}]")
    a("s_nop 0")
    for k in (0,1,4,5): a(f"v_permlane32_swap_b32 v{S+k}, v{S+k+2}")
    stamp(7)
    for i in range(L):
        x=X+4*i
        for d in range(4):
            if i==0: break
            a(f"v_lshlrev_b32 v{U+2*d}, 16, v{x+d}")
            a(f"v_and_b32 v{U+2*d+1}, s19, v{x+d}")
        for d in range(4): a(f"v_pk_mul_f32 v[{U+2*d}:{U+2*d+1}], v[{U+2*d}:{U+2*d+1}], v[{S+2*d}:{S+2*d+1}]")
        for d in range(4): a(f"v_cvt_pk_bf16_f32 v{x+d}, v{U+2*d}, v{U+2*d+1}")
        off=(i%3-1)*3072
        a(f"global_store_dwordx4 v1, v[{x}:{x+3}], s[10:11] offset:{off} {stf}")
        if i%3==2: a("v_add_u32 v1, s17, v1")
    def dump():
        if stamps:
            stamp(8); a("s_waitcnt vmcnt(0)"); stamp(9)
            a("s_waitcnt lgkmcnt(0)")
            a(f"s_mul_i32 s16, s2, 3\ns_add_u32 s16, s16, s3\ns_lshl_b32 s16, s16, 6\ns_add_u32 s16, s16, {STAMP}")
            a("s_mov_b64 exec, -1")
            a("v_mov_b32 v1, s16")
            for j in range(10): a(f"v_mov_b32 v{16+j}, s{60+2*j}")
            a("v_mov_b32 v26, s21\nv_mov_b32 v27, s25")
            a("s_mov_b64 exec, 1")
            for j in range(3): a(f"global_store_dwordx4 v1, v[{16+4*j}:{19+4*j}], s[14:15] offset:{16*j}")
    dump()
    if amp:
        stamp(8); a("s_waitcnt vmcnt(0)"); stamp(9)
        if amp[4] is not None: a(f"s_cmp_eq_u32 s2, {amp[4]}\ns_cbranch_scc0 L_end")
        a("s_memrealtime s[40:41]\ns_waitcnt lgkmcnt(0)")
        a(f"s_sub_u32 s16, s{60+2*amp[1]}, s{60+2*amp[0]}\ns_mul_i32 s16, s16, {amp[2]}\ns_lshr_b32 s16, s16, 4\ns_min_u32 s16, s16, 100000")
        if len(amp)>5: a(f"s_mov_b32 s16, {amp[5]}")
        a("L_amp:\ns_memrealtime s[42:43]\ns_waitcnt lgkmcnt(0)\ns_sub_u32 s17, s42, s40\ns_cmp_lt_u32 s17, s16\ns_cbranch_scc1 L_amp")
    a("L_end:\ns_endpgm")
    a("L_fb:")
    a("s_waitcnt vmcnt(0)")
    a("s_mov_b32 exec_lo, 0x00ff00ff\ns_mov_b32 exec_hi, 0x00ff00ff")
    a(f"global_store_dwordx4 v9, v[{ACC}:{ACC+3}], s[14:15] sc1")
    a("s_mov_b64 exec, -1")
    a("v_add_u32 v12, 2048, v12")
    a("s_branch L_fbdone")
    def redn(Y,n,Z):
        V=Z+4
        a(f"v_pk_add_f32 v[{Z}:{Z+1}], v[{Y}:{Y+1}], v[{Y+4}:{Y+5}]")
        a(f"v_pk_add_f32 v[{V}:{V+1}], v[{Y+8}:{Y+9}], v[{Y+12}:{Y+13}]")
        for i in range(n): a(f"v_lshlrev_b32 v{V+2+i}, 16, v{Y+4*i+2}")
        if n==7:
            a(f"v_pk_add_f32 v[{Z}:{Z+1}], v[{Z}:{Z+1}], v[{Y+16}:{Y+17}]")
            a(f"v_pk_add_f32 v[{V}:{V+1}], v[{V}:{V+1}], v[{Y+20}:{Y+21}]")
        a(f"v_max3_f32 v{Z+2}, v{Y+2}, v{Y+6}, v{Y+10}")
        a(f"v_max3_f32 v{Z+3}, v{V+2}, v{V+3}, v{V+4}")
        if n==7:
            a(f"v_pk_add_f32 v[{Z}:{Z+1}], v[{Z}:{Z+1}], v[{Y+24}:{Y+25}]")
            a(f"v_max3_f32 v{Z+2}, v{Z+2}, v{Y+14}, v{Y+18}")
            a(f"v_max3_f32 v{Z+3}, v{Z+3}, v{V+5}, v{V+6}")
        a(f"v_pk_add_f32 v[{Z}:{Z+1}], v[{Z}:{Z+1}], v[{V}:{V+1}]")
        if n==7:
            a(f"v_max3_f32 v{Z+2}, v{Z+2}, v{Y+22}, v{Y+26}")
            a(f"v_max3_f32 v{Z+3}, v{Z+3}, v{V+7}, v{V+8}")
        else:
            a(f"v_max_f32 v{Z+2}, v{Z+2}, v{Y+14}")
            a(f"v_max_f32 v{Z+3}, v{Z+3}, v{V+5}")
        a(f"v_permlane32_swap_b32 v{Z}, v{Z+1}")
    a("L_red:")
    a(f"v_mov_b32 v39, {EOFF}")
    a("s_and_b32 s27, s2, 7")
    a("s_mov_b32 s22, 0x07060302")
    a("s_waitcnt lgkmcnt(0)")
    a("global_load_dword v15, v39, s[14:15]")
    a("s_cmp_lt_u32 s2, 8")
    a("s_cbranch_scc1 L_mlp")
    a("s_cmp_eq_u32 s3, 2")
    a("s_cbranch_scc1 L_end")
    a("s_lshr_b32 s16, s2, 3")
    a("s_lshl_b32 s16, s16, 1")
    a("s_add_u32 s16, s16, s3")
    a("s_lshl_b32 s16, s16, 8")
    a(f"s_mul_i32 s17, s27, {GI}")
    a("s_add_u32 s17, s17, s16")
    a(f"s_add_u32 s17, s17, {2*SS-512}")
    a("s_mul_i32 s18, s27, 1536")
    a("s_add_u32 s18, s18, s16")
    a(f"s_add_u32 s18, s18, {OUTB-512}")
    a("v_lshrrev_b32 v4, 4, v2")
    a("v_and_b32 v6, 15, v2")
    a("v_lshl_add_u32 v8, v6, 4, s17")
    a("v_lshl_add_u32 v7, v6, 4, s18")
    a(f"v_mul_u32_u24 v6, {SS}, v4")
    a("v_add_u32 v8, v8, v6")
    a(f"v_mul_u32_u24 v6, {RS}, v4")
    a("v_add_u32 v7, v7, v6")
    a(f"v_add_u32 v6, {4*RS}, v7")
    for i in range(1,4): a(f"v_add_u32 v{8+i}, {8*SS*i}, v8")
    a(f"s_mov_b32 s21, {spin}")
    Y=16; Z=48
    def ld1(i): a(f"global_load_dwordx4 v[{Y+4*i}:{Y+4*i+3}], v{8+i//2}, s[14:15] offset:{(2*(i&1)-1)*2*SS} sc1")
    for i in range(7): ld1(i)
    a("s_waitcnt vmcnt(7)")
    a(f"v_add_u32 v15, {KEY:#x}, v15")
    stamp(1)
    a("s_branch L_chk1")
    a("L_poll1:")
    for i in range(7):
        if mask1: a(f"s_mov_b64 exec, s[{40+2*i}:{41+2*i}]")
        ld1(i)
    a("s_mov_b64 exec, -1")
    a("s_sub_u32 s21, s21, 1")
    a("s_cbranch_scc1 L_poll1done")
    a("L_chk1:")
    for i in range(7):
        a(f"s_waitcnt vmcnt({6-i})")
        a(f"v_cmp_ne_u32 s[{40+2*i}:{41+2*i}], v15, v{Y+4*i+3}")
        if i==2: a("s_or_b64 s[54:55], s[40:41], s[42:43]")
        if i>2: a(f"s_or_b64 s[54:55], s[54:55], s[{38+2*i}:{39+2*i}]")
    a("s_or_b64 s[54:55], s[54:55], s[52:53]")
    a("s_cbranch_scc1 L_poll1")
    a("L_poll1done:")
    stamp(2)
    redn(Y,7,Z)
    a(f"v_add_f32 v12, v{Z}, v{Z+1}")
    a(f"v_permlane32_swap_b32 v{Z+3}, v{Z+2}")
    a(f"v_add_f32 v13, v{Z}, v{Z+1}")
    a(f"v_max_f32 v8, v{Z+2}, v{Z+3}")
    a(f"v_max_f32 v9, v{Z+2}, v{Z+3}")
    a("v_permlane16_swap_b32 v12, v13")
    a("v_add_f32 v12, v12, v13")
    a("v_permlane16_swap_b32 v8, v9")
    a("v_mov_b32 v13, v12")
    a("v_max_f32 v10, v8, v9")
    a("v_max_f32 v11, v8, v9")
    a("v_permlane32_swap_b32 v12, v13")
    a("v_bitop3_b32 v15, v12, v13, v15 bitop3:0x96" if cap2 else "s_nop 0")
    a("v_permlane32_swap_b32 v10, v11")
    if REP==1: a("s_mov_b64 exec, 0xffff")
    a("v_perm_b32 v14, v11, v10, s22")
    if cap2: a("v_xor_b32 v15, v15, v14")
    a("global_store_dwordx4 v7, v[12:15], s[14:15] sc1")
    if REP>1: a("global_store_dwordx4 v6, v[12:15], s[14:15] sc1")
    if stamps:
        stamp(4); a("s_branch L_nobump")
    else: a("s_endpgm")
    a("L_mlp:")
    G=T; D1=T+20; H=W1; RW=48
    a("v_and_b32 v12, 31, v2")
    a("v_lshl_add_u32 v12, v3, 5, v12")
    a("v_lshrrev_b32 v14, 5, v2")
    a("v_mul_u32_u24 v14, 384, v14")
    a("v_lshl_add_u32 v34, v12, 2, v14")
    a("v_add_lshl_u32 v12, v12, v14, 4")
    a(f"s_mul_i32 s28, s27, {RS}")
    a(f"s_add_u32 s28, s28, {OUTB+3072}")
    a("v_add_u32 v36, s28, v12")
    a("s_mul_i32 s24, s3, 6144")
    a("v_lshl_add_u32 v12, v2, 4, s24")
    a("s_mov_b32 m0, s24")
    a("v_add_u32 v13, 3072, v12")
    for k in range(3): a(f"global_load_lds_dwordx4 v12, s[6:7] offset:{1024*k}")
    a(f"s_add_u32 m0, m0, 3072")
    a("v_lshrrev_b32 v14, 4, v2")
    for k in range(3): a(f"global_load_lds_dwordx4 v13, s[6:7] offset:{1024*k}")
    a("v_mul_u32_u24 v12, 1536, v14")
    a("v_lshl_add_u32 v12, v3, 7, v12")
    a("v_and_b32 v13, 7, v2")
    a("v_lshl_add_u32 v12, v13, 4, v12")
    a("v_and_b32 v13, 8, v2")
    a("v_add_u32 v12, v12, v13")
    for u in range(3):
        for i in range(4): a(f"global_load_dwordx2 v[{RW+8*u+2*i}:{RW+8*u+2*i+1}], v12, s[8:9] offset:{384*i}")
        if u<2: a("v_add_u32 v12, 6144, v12")
    a("s_lshl_b32 s28, s27, 12")
    a(f"s_add_u32 s28, s28, {CB}")
    a("v_lshl_add_u32 v37, v0, 2, s28")
    a("global_load_dword v5, v37, s[14:15] sc1")
    for i in range(4): a(f"global_load_dwordx4 v[{G+4*i}:{G+4*i+3}], v36, s[14:15] offset:{1536*i-3072} sc1")
    a("v_bfe_u32 v12, v2, 3, 1")
    a("v_bfe_u32 v13, v2, 2, 1")
    a("v_lshl_add_u32 v12, v12, 3, v13")
    a("v_lshl_add_u32 v12, v14, 1, v12")
    a("v_mul_u32_u24 v12, 96, v12")
    a("v_and_b32 v13, 3, v2")
    a("v_lshl_add_u32 v32, v13, 3, v12")
    a("v_and_b32 v12, 1, v2")
    a("v_mul_u32_u24 v12, 384, v12")
    a("v_lshl_add_u32 v35, v14, 4, v12")
    a("s_mov_b32 s23, 0x05040100")
    a(f"s_mov_b32 s20, {f2u(1.0/50176):#x}")
    a("s_mov_b32 s19, 0xffff0000")
    a("v_lshl_add_u32 v12, s27, 2, v39")
    a("v_lshl_add_u32 v33, v2, 2, v39")
    a("s_waitcnt vmcnt(5)")
    a("s_barrier")
    a(f"v_add_u32 v15, {KEY:#x}, v15")
    a("s_mov_b64 exec, 1")
    a("global_store_dword v12, v15, s[14:15] offset:256 sc1")
    a("s_mov_b64 exec, -1")
    for s in range(6):
        for t in range(3):
            for h in range(2):
                r=W1+(s*3+t)*4+2*h
                a(f"ds_read_b64_tr_b16 v[{r}:{r+1}], v32 offset:{(32*s+16*h)*96+32*t}")
    for t in range(4):
        for u in range(3):
            for j in range(2):
                a(f"v_perm_b32 v{W2+6*t+2*u+j}, v{RW+8*u+4*j+2+(t>>1)}, v{RW+8*u+4*j+(t>>1)}, s{22 if t&1 else 23}")
    a("s_waitcnt vmcnt(1)")
    a("v_and_b32 v38, 0xffff, v15")
    stamp(1)
    a(f"s_mov_b32 s21, {spin}")
    for i in range(4): a(f"s_mov_b64 s[{40+2*i}:{41+2*i}], -1")
    a("L_poll2:")
    for i in range(4):
        if mask2: a(f"s_mov_b64 exec, s[{40+2*i}:{41+2*i}]")
        a(f"global_load_dwordx4 v[{G+4*i}:{G+4*i+3}], v36, s[14:15] offset:{1536*i-3072} sc1")
    if mask2: a("s_mov_b64 exec, -1")
    a("s_sub_u32 s21, s21, 1")
    a("s_cbranch_scc1 L_poll2done")
    for i in range(4):
        if cap2:
            if i==0: a(f"s_waitcnt vmcnt({cap2})")
            a(f"v_bitop3_b32 v8, v{G+4*i}, v{G+4*i+1}, v{G+4*i+2} bitop3:0x96")
            a(f"v_xor_b32 v9, v15, v{G+4*i+3}")
            a(f"v_cmp_ne_u32 s[{40+2*i}:{41+2*i}], v8, v9")
        else:
            a(f"s_waitcnt vmcnt({3-i})")
            a(f"v_cmp_ne_u32 s[{40+2*i}:{41+2*i}], v15, v{G+4*i+3}")
        if i==2: a("s_or_b64 s[52:53], s[40:41], s[42:43]")
        if i==3: a("s_or_b64 s[52:53], s[52:53], s[44:45]")
    a("s_or_b64 s[52:53], s[52:53], s[46:47]")
    a("s_cbranch_scc1 L_poll2")
    a("L_poll2done:")
    stamp(5)
    redn(G,4,16); G=16
    a(f"v_add_f32 v{G}, v{G}, v{G+1}")
    a(f"v_permlane32_swap_b32 v{G+3}, v{G+2}")
    a(f"v_max_f32 v{G+2}, v{G+2}, v{G+3}")
    a(f"v_mul_f32 v{G}, s20, v{G}")
    a(f"v_and_b32 v{G+2}, s19, v{G+2}")
    a("s_nop 1")
    a(f"v_permlane32_swap_b32 v{G}, v{G+2}")
    a(f"v_cvt_pk_bf16_f32 v{G}, v{G}, v{G+2}")
    a(f"ds_write_b32 v34, v{G} offset:{XB}")
    a("s_waitcnt lgkmcnt(0)")
    a("s_barrier")
    stamp(6)
    B=[40,44,48,52,56,60]
    for s in range(6): a(f"ds_read_b128 v[{B[s]}:{B[s]+3}], v35 offset:{XB+64*s}")
    for s in range(6):
        a(f"s_waitcnt lgkmcnt({5-s})")
        for t in range(3):
            w=W1+(s*3+t)*4; d=D1+4*t
            c="0" if s==0 else f"v[{d}:{d+3}]"
            a(f"v_mfma_f32_16x16x32_bf16 v[{d}:{d+3}], v[{w}:{w+3}], v[{B[s]}:{B[s]+3}], {c}")
    a("s_nop 5")
    for t in range(3):
        for i in range(4): a(f"v_maximum3_f32 v{D1+4*t+i}, v{D1+4*t+i}, 0, 0")
        a(f"v_cvt_pk_bf16_f32 v{H+2*t}, v{D1+4*t}, v{D1+4*t+1}")
        a(f"v_cvt_pk_bf16_f32 v{H+2*t+1}, v{D1+4*t+2}, v{D1+4*t+3}")
    D2=W1+8
    a("s_nop 1")
    for t in range(4):
        a(f"v_mfma_f32_16x16x32_bf16 v[{D2+4*t}:{D2+4*t+3}], v[{H}:{H+3}], v[{W2+6*t}:{W2+6*t+3}], 0")
    for t in range(4):
        a(f"v_mfma_f32_16x16x16_bf16 v[{D2+4*t}:{D2+4*t+3}], v[{H+4}:{H+5}], v[{W2+6*t+4}:{W2+6*t+5}], v[{D2+4*t}:{D2+4*t+3}]")
    a("s_nop 4")
    P=W1+24
    for t in range(4): a(f"v_cvt_pk_bf16_f32 v{P+t}, v{D2+4*t}, v{D2+4*t+1}")
    a(f"v_permlane16_swap_b32 v{P}, v{P+1}")
    a("s_nop 0")
    a(f"v_permlane16_swap_b32 v{P+2}, v{P+3}")
    a("s_nop 1")
    a(f"v_permlane32_swap_b32 v{P}, v{P+2}")
    a(f"v_lshlrev_b32 v{P+1}, 16, v{P}")
    a(f"v_and_b32 v{P}, s19, v{P}")
    a(f"v_add_f32 v{P}, v{P}, v{P+1}")
    a(f"v_cvt_pk_bf16_f32 v{P}, v{P}, v{P}")
    a(f"v_and_b32 v{P}, s19, v{P}")
    a(f"v_mul_f32 v{P}, {f2u(-1.4426950408889634):#x}, v{P}")
    a(f"v_exp_f32 v{P}, v{P}")
    a("s_nop 0")
    a(f"v_add_f32 v{P}, 1.0, v{P}")
    a(f"v_rcp_f32 v{P}, v{P}")
    a("s_nop 0")
    a(f"v_cvt_pk_bf16_f32 v{P}, v{P}, v{P}")
    a(f"v_and_or_b32 v{P}, v{P}, s19, v38")
    a(f"global_store_dword v37, v{P}, s[14:15]")
    stamp(7)
    a(f"global_store_dword v37, v{P}, s[14:15] offset:2048 sc1")
    a("s_or_b32 s23, s2, s3")
    a("s_cbranch_scc1 L_nobump")
    a(f"s_mov_b32 s25, {spin}")
    a("s_mov_b64 exec, 0xff")
    a("L_tok:")
    a("global_load_dword v12, v33, s[14:15] offset:256 sc1")
    a("s_sub_u32 s25, s25, 1")
    a("s_cbranch_scc1 L_tokdone")
    a("s_waitcnt vmcnt(0)")
    a("v_cmp_ne_u32 vcc, v12, v15")
    a("s_cbranch_vccnz L_tok")
    a("L_tokdone:")
    a("s_mov_b64 exec, 1")
    a("global_store_dword v39, v15, s[14:15] sc1")
    a("L_nobump:")
    if stamps:
        a(f"s_add_u32 s2, s2, {NP}")
        dump()
    a("s_endpgm")
    a("L_pad:")
    a(f".fill ({192*PF}+256-(L_pad-{NAME}))/4, 4, 0xbf810000")
    a(f""".section .rodata,"a"
.p2align 6
.amdhsa_kernel {NAME}
  .amdhsa_next_free_vgpr 256
  .amdhsa_next_free_sgpr 96
  .amdhsa_accum_offset 256
  .amdhsa_group_segment_fixed_size 0
  .amdhsa_kernarg_size 48
  .amdhsa_user_sgpr_count 2
  .amdhsa_user_sgpr_kernarg_segment_ptr 1
  .amdhsa_system_sgpr_workgroup_id_x 1
  .amdhsa_float_denorm_mode_32 3
.end_amdhsa_kernel""")
    return "\n".join(o)+"\n"
if __name__=="__main__":
    kw=eval("dict(%s)"%(sys.argv[2] if len(sys.argv)>2 else ""))
    open(sys.argv[1],"w").write(gen(**kw))
```

```python
import sys, struct
NAME="standalone__channel_attn_cbam__vision_kernel"
HEAD="""; Kernarg layout for this problem (48 bytes, ptrs only, base s[0:1]):
"""
def f2u(f): return struct.unpack("<I",struct.pack("<f",f))[0]

def gen(ldf="nt", stf="sc1", stamps=False, pf=True, spin=1<<20, amp=None, touch='', eat=6, mask1=True, mask2=True, REP=8, pub='', fb=100, RS=12288+128, diag='', cap2=8, PF=44, W=28, il=1, nb=0, xc=0, sched=None, tch=None, pk=True, fbtest=False):
    NP=224; R=32; L=28; GI=49152; SS=1664; OUTB=0x80000; EOFF=0xd0000; STAMP=0x100000
    KEY=0x9e3779b1
    XB=18432; LDS=XB+768; CB=0xa0000
    if REP==1: RS=0
    o=[]; a=o.append
    nst=[0]
    def stamp(i):
        if stamps: a(f"s_memrealtime s[{60+2*i}:{61+2*i}]")
        elif amp and i in amp[:2]: a(f"{amp[3]} s[{60+2*i}:{61+2*i}]")
    a(HEAD+f"; @launch grid=({NP+R},1,1) block=(192,1,1) lds={LDS}")
    a(f'.amdgcn_target "amdgcn-amd-amdhsa--gfx950"\n.text\n.globl {NAME}\n.p2align 8\n.type {NAME},@function\n{NAME}:')
    X=0x10
    W1=128
    W2=200
    T=224
    vOff=1; vLane=2
    stamp(0)
    a("s_load_dwordx4 s[4:7], s[0:1], 0")
    a("s_load_dwordx4 s[8:11], s[0:1], 16")
    a("s_load_dwordx4 s[12:15], s[0:1], 32")
    a(f"s_cmp_ge_u32 s2, {NP+R}")
    a("s_cbranch_scc1 L_end")
    npf=0
    if pf:
        a("s_getpc_b64 s[30:31]")
        a(f"v_mul_u32_u24 v4, {PF}, v0")
        a("global_load_dword v5, v4, s[30:31]")
        npf=1
    a("v_lshrrev_b32 v3, 6, v0")
    a("v_and_b32 v2, 63, v0")
    a("v_readfirstlane_b32 s3, v3")
    a(f"s_cmp_lt_u32 s2, {R}")
    a("s_cbranch_scc1 L_red")
    a(f"s_sub_u32 s2, s2, {R}")
    if nb:
        il=9
        rel=[(i%nb)*3072+(i//nb)*224*nb*3072 for i in range(L)]
        seq=[]; cur=3072 if nb>2 else 0; cur0=cur
        for i in range(L):
            d=0
            if rel[i]-cur>3072:
                nc=rel[i]+(3072 if nb-(i%nb)>2 else 0); d=nc-cur; cur=nc
            seq.append((d,rel[i]-cur))
        ds=sorted(set(d for d,_ in seq if d))
        if xc: a(f"s_and_b32 s29, s2, 7\ns_mul_i32 s29, s29, 28\ns_lshr_b32 s16, s2, 3\ns_add_u32 s29, s29, s16\ns_mul_i32 s16, s29, {nb*3072}")
        else: a(f"s_mul_i32 s16, s2, {nb*3072}")
    elif il==2: a("s_and_b32 s29, s2, 7\ns_mul_i32 s29, s29, 28\ns_lshr_b32 s16, s2, 3\ns_add_u32 s29, s29, s16\ns_mul_i32 s16, s29, 86016")
    elif il==3: a("s_and_b32 s29, s2, 7\ns_mul_i32 s29, s29, 28*86016\ns_lshr_b32 s28, s2, 3\ns_mul_i32 s16, s28, 9216\ns_add_u32 s16, s16, s29")
    else: a(f"s_mul_i32 s16, s2, {9216 if il else 86016}")
    a("v_lshrrev_b32 v4, 3, v2")
    a("v_and_b32 v6, 7, v2")
    a("v_mul_u32_u24 v4, 384, v4")
    a("v_lshl_add_u32 v4, v3, 7, v4")
    a("v_lshl_add_u32 v4, v6, 4, v4")
    if not nb or cur0: a("s_add_u32 s16, s16, 3072")
    if nb:
        for k,d in enumerate(ds): a(f"s_mov_b32 s{32+k}, {d}")
    elif il==1: a("s_mov_b32 s17, 224*9216\ns_mul_i32 s29, s2, 6144\ns_sub_u32 s29, s17, s29")
    elif il==3: a("s_mov_b32 s17, 28*9216\ns_mul_i32 s29, s28, 6144\ns_sub_u32 s29, s17, s29")
    else: a("s_movk_i32 s17, 9216")
    a("v_add_u32 v1, s16, v4")
    a("v_mov_b32 v4, v1")
    a(f"v_mov_b32 v7, {EOFF}")
    a("s_waitcnt lgkmcnt(0)")
    if 'k' in diag: stamp(1)
    if eat=='s': a(f"s_load_dword s26, s[14:15], {EOFF}")
    ops=[]
    def ldx(i):
        if 'k' in diag and i==5:
            stamp(2)
            if 'f' in diag: a("s_waitcnt vmcnt(4)"); stamp(5)
        if i==eat: a("global_load_dword v8, v7, s[14:15]"); ops.append('e')
        if tch and i==tch[0]:
            a("v_mul_u32_u24 v10, 384, v2")
            a(f"s_add_u32 s18, s16, {(224-64)*384-3072}")
            a("v_lshl_add_u32 v10, v3, 7, v10")
            a("v_add_u32 v10, s18, v10")
            for k in range(tch[1]):
                a(f"v_subrev_u32 v11, {(tch[1]-1-k)*64*384}, v10")
                a(f"global_load_dword v5, v11, s[4:5] {tch[2]}"); ops.append('t')
                if len(tch)>3: a(f"global_load_dword v5, v11, s[4:5] offset:64 {tch[2]}"); ops.append('t')
        ops.append(i)
        off=(i%3-1)*3072
        if nb:
            d,off=seq[i]
            if d: a(f"v_add_u32 v4, s{32+ds.index(d)}, v4")
        a(f"global_load_dwordx4 v[{X+4*i}:{X+4*i+3}], v4, s[4:5] offset:{off} {ldf}")
        if i%3==2 and not nb: a(f"v_add_u32 v4, s{29 if il in (1,3) and i==26 else 17}, v4")
    assert eat=='s' or eat<W
    cum=[W]
    for p in range(14): cum.append(min(L,cum[-1]+(int(sched[p]) if sched and p<len(sched) else 2)))
    assert all(cum[p]>=2*p+2 for p in range(14))
    for i in range(W): ldx(i)
    if 'k' not in diag: stamp(1)
    A=T; ACC=T+28; ML=T+8; MH=T+12; TA=T+16; TB=T+20
    a("v_and_b32 v9, 1, v2")
    a("v_lshlrev_b32 v9, 4, v9")
    a("s_movk_i32 s18, 0x3f80")
    a("v_lshlrev_b32 v9, v9, s18")
    for d in range(4): a(f"v_mov_b32 v{A+d}, 0")
    for d in range(4): a(f"v_mov_b32_dpp v{A+d}, v9 quad_perm:[0,1,2,3] row_mask:0xf bank_mask:{1<<d:#x}")
    a("s_mov_b32 s19, 0xffff0000")
    a("v_lshrrev_b32 v9, 4, v2")
    a("v_and_b32 v10, 4, v2")
    a("v_add_u32 v9, v9, v10")
    a("v_lshl_add_u32 v9, v3, 3, v9")
    a("v_and_b32 v10, 3, v2")
    a("v_lshl_add_u32 v9, v9, 2, v10")
    a("s_and_b32 s27, s2, 7")
    a("s_lshr_b32 s20, s2, 3")
    a(f"s_mul_i32 s20, s20, {SS}")
    a(f"s_mul_i32 s28, s27, {GI}")
    a("s_add_u32 s20, s20, s28")
    a("v_lshl_add_u32 v9, v9, 4, s20")
    extra=0
    a("s_mov_b32 s22, 0x07060302")
    if 'o' in touch: a("global_load_dword v5, v1, s[10:11]"); extra+=1
    for p in range(L//2):
        i=2*p; xa=X+4*i; xb=xa+4
        a(f"s_waitcnt vmcnt({len(ops)-1-ops.index(i+1)})")
        if p==0 and 'k' not in diag: stamp(2)
        if p==L//2-2:
            if eat=='s': a("s_waitcnt lgkmcnt(0)\nv_mov_b32 v8, s26")
            a(f"v_add_u32 v8, {KEY:#x}, v8")
        nxt=range(cum[p],cum[p+1])
        if pk:
            AC2=T+24
            a(f"v_mfma_f32_16x16x32_bf16 v[{ACC}:{ACC+3}], v[{A}:{A+3}], v[{xa}:{xa+3}], {'0' if p==0 else f'v[{ACC}:{ACC+3}]'}")
            for k in nxt: ldx(k)
            for d in range(2): a(f"v_pk_maximum3_f16 v{MH+d}, v{xa+d if p==0 else MH+d}, v{xa+d}, v{xb+d}")
            a(f"v_mfma_f32_16x16x32_bf16 v[{AC2}:{AC2+3}], v[{A}:{A+3}], v[{xb}:{xb+3}], {'0' if p==0 else f'v[{AC2}:{AC2+3}]'}")
            for d in range(2,4): a(f"v_pk_maximum3_f16 v{MH+d}, v{xa+d if p==0 else MH+d}, v{xa+d}, v{xb+d}")
            continue
        for k in nxt: ldx(k)
        c = "0" if p==0 else f"v[{ACC}:{ACC+3}]"
        a(f"v_mfma_f32_16x16x32_bf16 v[{ACC}:{ACC+3}], v[{A}:{A+3}], v[{xa}:{xa+3}], {c}")
        for d in range(4): a(f"v_lshlrev_b32 v{TA+d}, 16, v{xa+d}")
        a(f"v_mfma_f32_16x16x32_bf16 v[{ACC}:{ACC+3}], v[{A}:{A+3}], v[{xb}:{xb+3}], v[{ACC}:{ACC+3}]")
        for d in range(4): a(f"v_lshlrev_b32 v{TB+d}, 16, v{xb+d}")
        for d in range(4):
            if p==0: a(f"v_max_f32 v{MH+d}, v{xa+d}, v{xb+d}")
            else: a(f"v_max3_f32 v{MH+d}, v{MH+d}, v{xa+d}, v{xb+d}")
        for d in range(4):
            if p==0: a(f"v_max_f32 v{ML+d}, v{TA+d}, v{TB+d}")
            else: a(f"v_max3_f32 v{ML+d}, v{ML+d}, v{TA+d}, v{TB+d}")
    stamp(3)
    if pk:
        a("s_movk_i32 s23, 3")
        a(f"v_permlane32_swap_b32 v{MH+0}, v{MH+2}")
        a(f"v_permlane32_swap_b32 v{MH+1}, v{MH+3}")
        a(f"v_pk_maximum3_f16 v{MH}, v{MH}, v{MH+2}, v{MH+2}")
        a(f"v_pk_maximum3_f16 v{MH+1}, v{MH+1}, v{MH+3}, v{MH+3}")
        a(f"v_mov_b32 v{ACC+3}, v8")
        a(f"v_pk_add_f32 v[{ACC}:{ACC+1}], v[{ACC}:{ACC+1}], v[{AC2}:{AC2+1}]")
        a(f"v_permlane16_swap_b32 v{MH+0}, v{MH+1}")
        a(f"v_pk_maximum3_f16 v{MH}, v{MH}, v{MH+1}, v{MH+1}")
        a(f"v_add_f32_dpp v{ACC+0}, v{ACC+0}, v{ACC+0} row_ror:8 row_mask:0xf bank_mask:0xf")
        a(f"v_add_f32_dpp v{ACC+1}, v{ACC+1}, v{ACC+1} row_ror:8 row_mask:0xf bank_mask:0xf")
        a(f"v_mov_b32_dpp v{MH+1}, v{MH} row_ror:8 row_mask:0xf bank_mask:0xf")
        a(f"v_cmp_u_f16_sdwa vcc, v{MH}, v{MH} src0_sel:WORD_0 src1_sel:WORD_1")
        a(f"v_pk_maximum3_f16 v{ACC+2}, v{MH}, v{MH+1}, v{MH+1}")
        a("s_branch L_exact" if fbtest else "s_cbranch_vccnz L_exact")
        a("L_exactdone:")
        a("s_mov_b32 exec_lo, 0x00ff00ff\ns_mov_b32 exec_hi, 0x00ff00ff")
    else:
        a(f"v_permlane32_swap_b32 v{MH+0}, v{MH+2}")
        a(f"v_permlane32_swap_b32 v{MH+1}, v{MH+3}")
        a(f"v_permlane32_swap_b32 v{ML+0}, v{ML+2}")
        a(f"v_permlane32_swap_b32 v{ML+1}, v{ML+3}")
        a(f"v_max_f32 v{MH+0}, v{MH+0}, v{MH+2}")
        a(f"v_max_f32 v{MH+1}, v{MH+1}, v{MH+3}")
        a(f"v_max_f32 v{ML+0}, v{ML+0}, v{ML+2}")
        a(f"v_max_f32 v{ML+1}, v{ML+1}, v{ML+3}")
        a(f"v_add_f32_dpp v{ACC+0}, v{ACC+0}, v{ACC+0} row_ror:8 row_mask:0xf bank_mask:0xf")
        a(f"v_permlane16_swap_b32 v{MH+0}, v{MH+1}")
        a(f"v_permlane16_swap_b32 v{ML+0}, v{ML+1}")
        a(f"v_add_f32_dpp v{ACC+1}, v{ACC+1}, v{ACC+1} row_ror:8 row_mask:0xf bank_mask:0xf")
        a(f"v_max_f32 v{MH+0}, v{MH+0}, v{MH+1}")
        a(f"v_max_f32 v{ML+0}, v{ML+0}, v{ML+1}")
        a(f"v_mov_b32 v{ACC+3}, v8")
        a(f"v_max_f32_dpp v{MH+0}, v{MH+0}, v{MH+0} row_ror:8 row_mask:0xf bank_mask:0xf")
        a(f"v_max_f32_dpp v{ML+0}, v{ML+0}, v{ML+0} row_ror:8 row_mask:0xf bank_mask:0xf")
        a("s_mov_b32 exec_lo, 0x00ff00ff\ns_mov_b32 exec_hi, 0x00ff00ff")
        a(f"v_perm_b32 v{ACC+2}, v{MH+0}, v{ML+0}, s22")
    a(f"global_store_dwordx4 v9, v[{ACC}:{ACC+3}], s[14:15] {pub}")
    a("s_mov_b64 exec, -1")
    stamp(4)
    S=T; U=T+8
    a("s_lshl_b32 s27, s27, 12")
    a(f"s_add_u32 s27, s27, {CB}")
    a("v_lshl_add_u32 v12, v0, 2, s27")
    a("v_and_b32 v11, 0xffff, v8")
    a(f"s_mov_b32 s21, {spin}")
    for d in range(4):
        a(f"v_lshlrev_b32 v{U+2*d}, 16, v{X+d}")
        a(f"v_and_b32 v{U+2*d+1}, s19, v{X+d}")
    if 'f' not in diag: stamp(5)
    a("L_poll3:")
    a("global_load_dword v10, v12, s[14:15] sc1")
    a(f"s_cmp_eq_u32 s21, {spin-fb}")
    a("s_cbranch_scc1 L_fb")
    a("L_fbdone:")
    a("s_sub_u32 s21, s21, 1")
    a("s_cbranch_scc1 L_poll3done")
    a("s_waitcnt vmcnt(0)")
    a("v_cmp_ne_u16 vcc, v10, v11")
    a("s_cbranch_vccnz L_poll3")
    a("L_poll3done:")
    stamp(6)
    a(f"v_xor_b32 v{S}, v10, v11")
    a(f"v_xor_b32 v{S+4}, v10, v11")
    a(f"v_xor_b32_dpp v{S}, v10, v11 row_ror:8 row_mask:0xf bank_mask:0xc")
    a(f"v_xor_b32_dpp v{S+4}, v10, v11 row_ror:8 row_mask:0xf bank_mask:0x3")
    a(f"v_mov_b32 v{S+1}, v{S}")
    a(f"v_mov_b32 v{S+5}, v{S+4}")
    a("s_nop 0")
    a(f"v_permlane16_swap_b32 v{S}, v{S+1}")
    a(f"v_permlane16_swap_b32 v{S+4}, v{S+5}")
    a(f"v_mov_b64 v[{S+2}:{S+3}], v[{S}:{S+1}]")
    a(f"v_mov_b64 v[{S+6}:{S+7}], v[{S+4}:{S+5}]")
    a("s_nop 0")
    for k in (0,1,4,5): a(f"v_permlane32_swap_b32 v{S+k}, v{S+k+2}")
    stamp(7)
    for i in range(L):
        x=X+4*i
        for d in range(4):
            if i==0: break
            a(f"v_lshlrev_b32 v{U+2*d}, 16, v{x+d}")
            a(f"v_and_b32 v{U+2*d+1}, s19, v{x+d}")
        for d in range(4): a(f"v_pk_mul_f32 v[{U+2*d}:{U+2*d+1}], v[{U+2*d}:{U+2*d+1}], v[{S+2*d}:{S+2*d+1}]")
        for d in range(4): a(f"v_cvt_pk_bf16_f32 v{x+d}, v{U+2*d}, v{U+2*d+1}")
        off=(i%3-1)*3072
        if nb:
            d,off=seq[i]
            if d: a(f"v_add_u32 v1, s{32+ds.index(d)}, v1")
        a(f"global_store_dwordx4 v1, v[{x}:{x+3}], s[10:11] offset:{off} {stf}")
        if i%3==2 and not nb: a(f"v_add_u32 v1, s{29 if il in (1,3) and i==26 else 17}, v1")
    def dump():
        if stamps:
            stamp(8); a("s_waitcnt vmcnt(0)"); stamp(9)
            a("s_waitcnt lgkmcnt(0)")
            a(f"s_mul_i32 s16, s2, 3\ns_add_u32 s16, s16, s3\ns_lshl_b32 s16, s16, 6\ns_add_u32 s16, s16, {STAMP}")
            a("s_mov_b64 exec, -1")
            a("v_mov_b32 v1, s16")
            for j in range(10): a(f"v_mov_b32 v{16+j}, s{60+2*j}")
            a("v_mov_b32 v26, s21\nv_mov_b32 v27, s25")
            a("s_mov_b64 exec, 1")
            for j in range(3): a(f"global_store_dwordx4 v1, v[{16+4*j}:{19+4*j}], s[14:15] offset:{16*j}")
    dump()
    if amp:
        stamp(8); a("s_waitcnt vmcnt(0)"); stamp(9)
        if amp[4] is not None: a(f"s_cmp_eq_u32 s2, {amp[4]}\ns_cbranch_scc0 L_end")
        a("s_memrealtime s[40:41]\ns_waitcnt lgkmcnt(0)")
        a(f"s_sub_u32 s16, s{60+2*amp[1]}, s{60+2*amp[0]}\ns_mul_i32 s16, s16, {amp[2]}\ns_lshr_b32 s16, s16, 4\ns_min_u32 s16, s16, 100000")
        if len(amp)>5: a(f"s_mov_b32 s16, {amp[5]}")
        a("L_amp:\ns_memrealtime s[42:43]\ns_waitcnt lgkmcnt(0)\ns_sub_u32 s17, s42, s40\ns_cmp_lt_u32 s17, s16\ns_cbranch_scc1 L_amp")
    a("L_end:\ns_endpgm")
    a("L_fb:")
    a("s_waitcnt vmcnt(0)")
    a("s_mov_b32 exec_lo, 0x00ff00ff\ns_mov_b32 exec_hi, 0x00ff00ff")
    a(f"global_store_dwordx4 v9, v[{ACC}:{ACC+3}], s[14:15] sc1")
    a("s_mov_b64 exec, -1")
    a("v_add_u32 v12, 2048, v12")
    a("s_branch L_fbdone")
    def redn(Y,n,Z):
        V=Z+4
        a(f"v_pk_add_f32 v[{Z}:{Z+1}], v[{Y}:{Y+1}], v[{Y+4}:{Y+5}]")
        a(f"v_pk_add_f32 v[{V}:{V+1}], v[{Y+8}:{Y+9}], v[{Y+12}:{Y+13}]")
        for i in range(n): a(f"v_lshlrev_b32 v{V+2+i}, 16, v{Y+4*i+2}")
        if n==7:
            a(f"v_pk_add_f32 v[{Z}:{Z+1}], v[{Z}:{Z+1}], v[{Y+16}:{Y+17}]")
            a(f"v_pk_add_f32 v[{V}:{V+1}], v[{V}:{V+1}], v[{Y+20}:{Y+21}]")
        a(f"v_max3_f32 v{Z+2}, v{Y+2}, v{Y+6}, v{Y+10}")
        a(f"v_max3_f32 v{Z+3}, v{V+2}, v{V+3}, v{V+4}")
        if n==7:
            a(f"v_pk_add_f32 v[{Z}:{Z+1}], v[{Z}:{Z+1}], v[{Y+24}:{Y+25}]")
            a(f"v_max3_f32 v{Z+2}, v{Z+2}, v{Y+14}, v{Y+18}")
            a(f"v_max3_f32 v{Z+3}, v{Z+3}, v{V+5}, v{V+6}")
        a(f"v_pk_add_f32 v[{Z}:{Z+1}], v[{Z}:{Z+1}], v[{V}:{V+1}]")
        if n==7:
            a(f"v_max3_f32 v{Z+2}, v{Z+2}, v{Y+22}, v{Y+26}")
            a(f"v_max3_f32 v{Z+3}, v{Z+3}, v{V+7}, v{V+8}")
        else:
            a(f"v_max_f32 v{Z+2}, v{Z+2}, v{Y+14}")
            a(f"v_max_f32 v{Z+3}, v{Z+3}, v{V+5}")
        a(f"v_permlane32_swap_b32 v{Z}, v{Z+1}")
    a("L_red:")
    a(f"v_mov_b32 v39, {EOFF}")
    a("s_and_b32 s27, s2, 7")
    a("s_mov_b32 s22, 0x07060302")
    a("s_waitcnt lgkmcnt(0)")
    a("global_load_dword v15, v39, s[14:15]")
    a("s_cmp_lt_u32 s2, 8")
    a("s_cbranch_scc1 L_mlp")
    a("s_cmp_eq_u32 s3, 2")
    a("s_cbranch_scc1 L_end")
    a("s_lshr_b32 s16, s2, 3")
    a("s_lshl_b32 s16, s16, 1")
    a("s_add_u32 s16, s16, s3")
    a("s_lshl_b32 s16, s16, 8")
    a(f"s_mul_i32 s17, s27, {GI}")
    a("s_add_u32 s17, s17, s16")
    a(f"s_add_u32 s17, s17, {2*SS-512}")
    a("s_mul_i32 s18, s27, 1536")
    a("s_add_u32 s18, s18, s16")
    a(f"s_add_u32 s18, s18, {OUTB-512}")
    a("v_lshrrev_b32 v4, 4, v2")
    a("v_and_b32 v6, 15, v2")
    a("v_lshl_add_u32 v8, v6, 4, s17")
    a("v_lshl_add_u32 v7, v6, 4, s18")
    a(f"v_mul_u32_u24 v6, {SS}, v4")
    a("v_add_u32 v8, v8, v6")
    a(f"v_mul_u32_u24 v6, {RS}, v4")
    a("v_add_u32 v7, v7, v6")
    a(f"v_add_u32 v6, {4*RS}, v7")
    for i in range(1,4): a(f"v_add_u32 v{8+i}, {8*SS*i}, v8")
    a(f"s_mov_b32 s21, {spin}")
    Y=16; Z=48
    def ld1(i): a(f"global_load_dwordx4 v[{Y+4*i}:{Y+4*i+3}], v{8+i//2}, s[14:15] offset:{(2*(i&1)-1)*2*SS} sc1")
    for i in range(7): ld1(i)
    a("s_waitcnt vmcnt(7)")
    a(f"v_add_u32 v15, {KEY:#x}, v15")
    stamp(1)
    a("s_branch L_chk1")
    a("L_poll1:")
    for i in range(7):
        if mask1: a(f"s_mov_b64 exec, s[{40+2*i}:{41+2*i}]")
        ld1(i)
    a("s_mov_b64 exec, -1")
    a("s_sub_u32 s21, s21, 1")
    a("s_cbranch_scc1 L_poll1done")
    a("L_chk1:")
    for i in range(7):
        a(f"s_waitcnt vmcnt({6-i})")
        a(f"v_cmp_ne_u32 s[{40+2*i}:{41+2*i}], v15, v{Y+4*i+3}")
        if i==2: a("s_or_b64 s[54:55], s[40:41], s[42:43]")
        if i>2: a(f"s_or_b64 s[54:55], s[54:55], s[{38+2*i}:{39+2*i}]")
    a("s_or_b64 s[54:55], s[54:55], s[52:53]")
    a("s_cbranch_scc1 L_poll1")
    a("L_poll1done:")
    stamp(2)
    redn(Y,7,Z)
    a(f"v_add_f32 v12, v{Z}, v{Z+1}")
    a(f"v_permlane32_swap_b32 v{Z+3}, v{Z+2}")
    a(f"v_add_f32 v13, v{Z}, v{Z+1}")
    a(f"v_max_f32 v8, v{Z+2}, v{Z+3}")
    a(f"v_max_f32 v9, v{Z+2}, v{Z+3}")
    a("v_permlane16_swap_b32 v12, v13")
    a("v_add_f32 v12, v12, v13")
    a("v_permlane16_swap_b32 v8, v9")
    a("v_mov_b32 v13, v12")
    a("v_max_f32 v10, v8, v9")
    a("v_max_f32 v11, v8, v9")
    a("v_permlane32_swap_b32 v12, v13")
    a("v_bitop3_b32 v15, v12, v13, v15 bitop3:0x96" if cap2 else "s_nop 0")
    a("v_permlane32_swap_b32 v10, v11")
    if REP==1: a("s_mov_b64 exec, 0xffff")
    a("v_perm_b32 v14, v11, v10, s22")
    if cap2: a("v_xor_b32 v15, v15, v14")
    a("global_store_dwordx4 v7, v[12:15], s[14:15] sc1")
    if REP>1: a("global_store_dwordx4 v6, v[12:15], s[14:15] sc1")
    if stamps:
        stamp(4); a("s_branch L_nobump")
    else: a("s_endpgm")
    a("L_mlp:")
    G=T; D1=T+20; H=W1; RW=48
    a("v_and_b32 v12, 31, v2")
    a("v_lshl_add_u32 v12, v3, 5, v12")
    a("v_lshrrev_b32 v14, 5, v2")
    a("v_mul_u32_u24 v14, 384, v14")
    a("v_lshl_add_u32 v34, v12, 2, v14")
    a("v_add_lshl_u32 v12, v12, v14, 4")
    a(f"s_mul_i32 s28, s27, {RS}")
    a(f"s_add_u32 s28, s28, {OUTB+3072}")
    a("v_add_u32 v36, s28, v12")
    a("s_mul_i32 s24, s3, 6144")
    a("v_lshl_add_u32 v12, v2, 4, s24")
    a("s_mov_b32 m0, s24")
    a("v_add_u32 v13, 3072, v12")
    for k in range(3): a(f"global_load_lds_dwordx4 v12, s[6:7] offset:{1024*k}")
    a(f"s_add_u32 m0, m0, 3072")
    a("v_lshrrev_b32 v14, 4, v2")
    for k in range(3): a(f"global_load_lds_dwordx4 v13, s[6:7] offset:{1024*k}")
    a("v_mul_u32_u24 v12, 1536, v14")
    a("v_lshl_add_u32 v12, v3, 7, v12")
    a("v_and_b32 v13, 7, v2")
    a("v_lshl_add_u32 v12, v13, 4, v12")
    a("v_and_b32 v13, 8, v2")
    a("v_add_u32 v12, v12, v13")
    for u in range(3):
        for i in range(4): a(f"global_load_dwordx2 v[{RW+8*u+2*i}:{RW+8*u+2*i+1}], v12, s[8:9] offset:{384*i}")
        if u<2: a("v_add_u32 v12, 6144, v12")
    a("s_lshl_b32 s28, s27, 12")
    a(f"s_add_u32 s28, s28, {CB}")
    a("v_lshl_add_u32 v37, v0, 2, s28")
    a("global_load_dword v5, v37, s[14:15] sc1")
    for i in range(4): a(f"global_load_dwordx4 v[{G+4*i}:{G+4*i+3}], v36, s[14:15] offset:{1536*i-3072} sc1")
    a("v_bfe_u32 v12, v2, 3, 1")
    a("v_bfe_u32 v13, v2, 2, 1")
    a("v_lshl_add_u32 v12, v12, 3, v13")
    a("v_lshl_add_u32 v12, v14, 1, v12")
    a("v_mul_u32_u24 v12, 96, v12")
    a("v_and_b32 v13, 3, v2")
    a("v_lshl_add_u32 v32, v13, 3, v12")
    a("v_and_b32 v12, 1, v2")
    a("v_mul_u32_u24 v12, 384, v12")
    a("v_lshl_add_u32 v35, v14, 4, v12")
    a("s_mov_b32 s23, 0x05040100")
    a(f"s_mov_b32 s20, {f2u(1.0/50176):#x}")
    a("s_mov_b32 s19, 0xffff0000")
    a("v_lshl_add_u32 v12, s27, 2, v39")
    a("v_lshl_add_u32 v33, v2, 2, v39")
    a("s_waitcnt vmcnt(5)")
    a("s_barrier")
    a(f"v_add_u32 v15, {KEY:#x}, v15")
    a("s_mov_b64 exec, 1")
    a("global_store_dword v12, v15, s[14:15] offset:256 sc1")
    a("s_mov_b64 exec, -1")
    for s in range(6):
        for t in range(3):
            for h in range(2):
                r=W1+(s*3+t)*4+2*h
                a(f"ds_read_b64_tr_b16 v[{r}:{r+1}], v32 offset:{(32*s+16*h)*96+32*t}")
    for t in range(4):
        for u in range(3):
            for j in range(2):
                a(f"v_perm_b32 v{W2+6*t+2*u+j}, v{RW+8*u+4*j+2+(t>>1)}, v{RW+8*u+4*j+(t>>1)}, s{22 if t&1 else 23}")
    a("s_waitcnt vmcnt(1)")
    a("v_and_b32 v38, 0xffff, v15")
    stamp(1)
    a(f"s_mov_b32 s21, {spin}")
    for i in range(4): a(f"s_mov_b64 s[{40+2*i}:{41+2*i}], -1")
    a("L_poll2:")
    for i in range(4):
        if mask2: a(f"s_mov_b64 exec, s[{40+2*i}:{41+2*i}]")
        a(f"global_load_dwordx4 v[{G+4*i}:{G+4*i+3}], v36, s[14:15] offset:{1536*i-3072} sc1")
    if mask2: a("s_mov_b64 exec, -1")
    a("s_sub_u32 s21, s21, 1")
    a("s_cbranch_scc1 L_poll2done")
    for i in range(4):
        if cap2:
            if i==0: a(f"s_waitcnt vmcnt({cap2})")
            a(f"v_bitop3_b32 v8, v{G+4*i}, v{G+4*i+1}, v{G+4*i+2} bitop3:0x96")
            a(f"v_xor_b32 v9, v15, v{G+4*i+3}")
            a(f"v_cmp_ne_u32 s[{40+2*i}:{41+2*i}], v8, v9")
        else:
            a(f"s_waitcnt vmcnt({3-i})")
            a(f"v_cmp_ne_u32 s[{40+2*i}:{41+2*i}], v15, v{G+4*i+3}")
        if i==2: a("s_or_b64 s[52:53], s[40:41], s[42:43]")
        if i==3: a("s_or_b64 s[52:53], s[52:53], s[44:45]")
    a("s_or_b64 s[52:53], s[52:53], s[46:47]")
    a("s_cbranch_scc1 L_poll2")
    a("L_poll2done:")
    stamp(5)
    redn(G,4,16); G=16
    a(f"v_add_f32 v{G}, v{G}, v{G+1}")
    a(f"v_permlane32_swap_b32 v{G+3}, v{G+2}")
    a(f"v_max_f32 v{G+2}, v{G+2}, v{G+3}")
    a(f"v_mul_f32 v{G}, s20, v{G}")
    a(f"v_and_b32 v{G+2}, s19, v{G+2}")
    a("s_nop 1")
    a(f"v_permlane32_swap_b32 v{G}, v{G+2}")
    a(f"v_cvt_pk_bf16_f32 v{G}, v{G}, v{G+2}")
    a(f"ds_write_b32 v34, v{G} offset:{XB}")
    a("s_waitcnt lgkmcnt(0)")
    a("s_barrier")
    stamp(6)
    B=[40,44,48,52,56,60]
    for s in range(6): a(f"ds_read_b128 v[{B[s]}:{B[s]+3}], v35 offset:{XB+64*s}")
    for s in range(6):
        a(f"s_waitcnt lgkmcnt({5-s})")
        for t in range(3):
            w=W1+(s*3+t)*4; d=D1+4*t
            c="0" if s==0 else f"v[{d}:{d+3}]"
            a(f"v_mfma_f32_16x16x32_bf16 v[{d}:{d+3}], v[{w}:{w+3}], v[{B[s]}:{B[s]+3}], {c}")
    a("s_nop 5")
    for t in range(3):
        for i in range(4): a(f"v_maximum3_f32 v{D1+4*t+i}, v{D1+4*t+i}, 0, 0")
        a(f"v_cvt_pk_bf16_f32 v{H+2*t}, v{D1+4*t}, v{D1+4*t+1}")
        a(f"v_cvt_pk_bf16_f32 v{H+2*t+1}, v{D1+4*t+2}, v{D1+4*t+3}")
    D2=W1+8
    a("s_nop 1")
    for t in range(4):
        a(f"v_mfma_f32_16x16x32_bf16 v[{D2+4*t}:{D2+4*t+3}], v[{H}:{H+3}], v[{W2+6*t}:{W2+6*t+3}], 0")
    for t in range(4):
        a(f"v_mfma_f32_16x16x16_bf16 v[{D2+4*t}:{D2+4*t+3}], v[{H+4}:{H+5}], v[{W2+6*t+4}:{W2+6*t+5}], v[{D2+4*t}:{D2+4*t+3}]")
    a("s_nop 4")
    P=W1+24
    for t in range(4): a(f"v_cvt_pk_bf16_f32 v{P+t}, v{D2+4*t}, v{D2+4*t+1}")
    a(f"v_permlane16_swap_b32 v{P}, v{P+1}")
    a("s_nop 0")
    a(f"v_permlane16_swap_b32 v{P+2}, v{P+3}")
    a("s_nop 1")
    a(f"v_permlane32_swap_b32 v{P}, v{P+2}")
    a(f"v_lshlrev_b32 v{P+1}, 16, v{P}")
    a(f"v_and_b32 v{P}, s19, v{P}")
    a(f"v_add_f32 v{P}, v{P}, v{P+1}")
    a(f"v_cvt_pk_bf16_f32 v{P}, v{P}, v{P}")
    a(f"v_and_b32 v{P}, s19, v{P}")
    a(f"v_mul_f32 v{P}, {f2u(-1.4426950408889634):#x}, v{P}")
    a(f"v_exp_f32 v{P}, v{P}")
    a("s_nop 0")
    a(f"v_add_f32 v{P}, 1.0, v{P}")
    a(f"v_rcp_f32 v{P}, v{P}")
    a("s_nop 0")
    a(f"v_cvt_pk_bf16_f32 v{P}, v{P}, v{P}")
    a(f"v_and_or_b32 v{P}, v{P}, s19, v38")
    a(f"global_store_dword v37, v{P}, s[14:15]")
    stamp(7)
    a(f"global_store_dword v37, v{P}, s[14:15] offset:2048 sc1")
    a("s_or_b32 s23, s2, s3")
    a("s_cbranch_scc1 L_nobump")
    a(f"s_mov_b32 s25, {spin}")
    a("s_mov_b64 exec, 0xff")
    a("L_tok:")
    a("global_load_dword v12, v33, s[14:15] offset:256 sc1")
    a("s_sub_u32 s25, s25, 1")
    a("s_cbranch_scc1 L_tokdone")
    a("s_waitcnt vmcnt(0)")
    a("v_cmp_ne_u32 vcc, v12, v15")
    a("s_cbranch_vccnz L_tok")
    a("L_tokdone:")
    a("s_mov_b64 exec, 1")
    a("global_store_dword v39, v15, s[14:15] sc1")
    a("L_nobump:")
    if stamps:
        a(f"s_add_u32 s2, s2, {NP}")
        dump()
    a("s_endpgm")
    if pk:
        a("L_exact:")
        for p in range(L//2):
            xa=X+8*p; xb=xa+4
            for d in range(4): a(f"v_lshlrev_b32 v{TA+d}, 16, v{xa+d}\nv_lshlrev_b32 v{TB+d}, 16, v{xb+d}")
            for d in range(4): a(f"v_maximum3_f32 v{ML+d}, v{TA+d if p==0 else ML+d}, v{TA+d}, v{TB+d}")
            for d in range(4): a(f"v_and_b32 v{TA+d}, s19, v{xa+d}\nv_and_b32 v{TB+d}, s19, v{xb+d}")
            for d in range(4): a(f"v_maximum3_f32 v{MH+d}, v{TA+d if p==0 else MH+d}, v{TA+d}, v{TB+d}")
        for M in (ML,MH):
            a("s_nop 1")
            a(f"v_permlane32_swap_b32 v{M}, v{M+2}\nv_permlane32_swap_b32 v{M+1}, v{M+3}")
            a(f"v_maximum3_f32 v{M}, v{M}, v{M+2}, v{M+2}\nv_maximum3_f32 v{M+1}, v{M+1}, v{M+3}, v{M+3}\ns_nop 1")
            a(f"v_permlane16_swap_b32 v{M}, v{M+1}")
            a(f"v_maximum3_f32 v{M}, v{M}, v{M+1}, v{M+1}\ns_nop 1")
            a(f"v_mov_b32_dpp v{M+1}, v{M} row_ror:8 row_mask:0xf bank_mask:0xf")
            a(f"v_maximum3_f32 v{M}, v{M}, v{M+1}, v{M+1}")
        a(f"v_perm_b32 v{ACC+2}, v{MH}, v{ML}, s22")
        a("s_branch L_exactdone")
        a("s_endpgm")
    a("L_pad:")
    if not pk: a(f".fill ({192*PF}+256-(L_pad-{NAME}))/4, 4, 0xbf810000")
    a(f""".section .rodata,"a"
.p2align 6
.amdhsa_kernel {NAME}
  .amdhsa_next_free_vgpr 256
  .amdhsa_next_free_sgpr 96
  .amdhsa_accum_offset 256
  .amdhsa_group_segment_fixed_size 0
  .amdhsa_kernarg_size 48
  .amdhsa_user_sgpr_count 2
  .amdhsa_user_sgpr_kernarg_segment_ptr 1
  .amdhsa_system_sgpr_workgroup_id_x 1
  .amdhsa_float_denorm_mode_32 3
.end_amdhsa_kernel""")
    return "\n".join(o)+"\n"
if __name__=="__main__":
    kw=eval("dict(%s)"%(sys.argv[2] if len(sys.argv)>2 else ""))
    open(sys.argv[1],"w").write(gen(**kw))
```

```python
import sys, struct
NAME="standalone__channel_attn_cbam__vision_kernel"
HEAD="""; Kernarg layout for this problem (48 bytes, ptrs only, base s[0:1]):
"""
def f2u(f): return struct.unpack("<I",struct.pack("<f",f))[0]

def gen(ldf="nt", stf="sc1", stamps=False, pf=True, spin=1<<20, amp=None, touch='', eat=6, mask1=True, mask2=True, REP=8, pub='', fb=100, RS=12288+128, diag='', cap2=0, PF=44, W=28, il=1, nb=4, xc=1, st2=None, leanA=True, leanB=True, wb=None, kpos=5, atomB=None, fm=True, cap3=0, cap1=0, clean=None, sched=None, tch=None, pk=True, fbtest=False):
    NP=224; R=32; L=28; GI=49152; SS=1664; OUTB=0x80000; EOFF=0xd0000; STAMP=0x100000
    KEY=0x9e3779b1
    XB=18432; LDS=XB+768; CB=0xa0000
    if REP==1: RS=0
    o=[]; a=o.append
    nst=[0]
    def stamp(i):
        if stamps: a(f"s_memrealtime s[{60+2*i}:{61+2*i}]")
        elif amp and i in amp[:2]: a(f"{amp[3]} s[{60+2*i}:{61+2*i}]")
    a(HEAD+f"; @launch grid=({NP+R},1,1) block=(192,1,1) lds={LDS}")
    a(f'.amdgcn_target "amdgcn-amd-amdhsa--gfx950"\n.text\n.globl {NAME}\n.p2align 8\n.type {NAME},@function\n{NAME}:')
    X=0x10
    W1=128
    W2=200
    T=224
    vOff=1; vLane=2
    stamp(0)
    a("s_load_dwordx4 s[4:7], s[0:1], 0")
    a("s_load_dwordx4 s[8:11], s[0:1], 16")
    a("s_load_dwordx4 s[12:15], s[0:1], 32")
    a(f"s_cmp_ge_u32 s2, {NP+R}")
    a("s_cbranch_scc1 L_end")
    npf=0
    if pf:
        a("s_getpc_b64 s[30:31]")
        a(f"v_mul_u32_u24 v4, {PF}, v0")
        a("global_load_dword v5, v4, s[30:31]")
        npf=1
    a("v_lshrrev_b32 v3, 6, v0")
    a("v_and_b32 v2, 63, v0")
    a("v_readfirstlane_b32 s3, v3")
    a(f"s_cmp_lt_u32 s2, {R}")
    a("s_cbranch_scc1 L_red")
    a(f"s_sub_u32 s2, s2, {R}")
    if nb:
        il=9
        rel=[(i%nb)*3072+(i//nb)*224*nb*3072 for i in range(L)]
        seq=[]; cur=3072 if nb>2 else 0; cur0=cur
        for i in range(L):
            d=0
            if rel[i]-cur>3072:
                nc=rel[i]+(3072 if nb-(i%nb)>2 else 0); d=nc-cur; cur=nc
            seq.append((d,rel[i]-cur))
        ds=sorted(set(d for d,_ in seq if d))
        if xc: a(f"s_and_b32 s29, s2, 7\ns_mul_i32 s29, s29, 28\ns_lshr_b32 s16, s2, 3\ns_add_u32 s29, s29, s16\ns_mul_i32 s16, s29, {nb*3072}")
        else: a(f"s_mul_i32 s16, s2, {nb*3072}")
    elif il==2: a("s_and_b32 s29, s2, 7\ns_mul_i32 s29, s29, 28\ns_lshr_b32 s16, s2, 3\ns_add_u32 s29, s29, s16\ns_mul_i32 s16, s29, 86016")
    elif il==3: a("s_and_b32 s29, s2, 7\ns_mul_i32 s29, s29, 28*86016\ns_lshr_b32 s28, s2, 3\ns_mul_i32 s16, s28, 9216\ns_add_u32 s16, s16, s29")
    else: a(f"s_mul_i32 s16, s2, {9216 if il else 86016}")
    a("v_lshrrev_b32 v4, 3, v2")
    a("v_and_b32 v6, 7, v2")
    a("v_mul_u32_u24 v4, 384, v4")
    a("v_lshl_add_u32 v4, v3, 7, v4")
    a("v_lshl_add_u32 v4, v6, 4, v4")
    if not nb or cur0: a("s_add_u32 s16, s16, 3072")
    if nb:
        for k,d in enumerate(ds): a(f"s_mov_b32 s{32+k}, {d}")
    elif il==1: a("s_mov_b32 s17, 224*9216\ns_mul_i32 s29, s2, 6144\ns_sub_u32 s29, s17, s29")
    elif il==3: a("s_mov_b32 s17, 28*9216\ns_mul_i32 s29, s28, 6144\ns_sub_u32 s29, s17, s29")
    else: a("s_movk_i32 s17, 9216")
    a("v_add_u32 v1, s16, v4")
    a("v_mov_b32 v4, v1")
    a(f"v_mov_b32 v7, {EOFF}")
    a("s_waitcnt lgkmcnt(0)")
    if 'k' in diag: stamp(1)
    if eat=='s': a(f"s_load_dword s26, s[14:15], {EOFF}")
    ops=[]
    def ldx(i):
        if 'k' in diag and i==kpos:
            stamp(2)
            if 'f' in diag: a("s_waitcnt vmcnt(4)"); stamp(5)
        if i==eat: a("global_load_dword v8, v7, s[14:15]"); ops.append('e')
        if tch and i==tch[0]:
            a("v_mul_u32_u24 v10, 384, v2")
            a(f"s_add_u32 s18, s16, {(224-64)*384-3072}")
            a("v_lshl_add_u32 v10, v3, 7, v10")
            a("v_add_u32 v10, s18, v10")
            for k in range(tch[1]):
                a(f"v_subrev_u32 v11, {(tch[1]-1-k)*64*384}, v10")
                a(f"global_load_dword v5, v11, s[4:5] {tch[2]}"); ops.append('t')
                if len(tch)>3: a(f"global_load_dword v5, v11, s[4:5] offset:64 {tch[2]}"); ops.append('t')
        ops.append(i)
        off=(i%3-1)*3072
        if nb:
            d,off=seq[i]
            if d: a(f"v_add_u32 v4, s{32+ds.index(d)}, v4")
        a(f"global_load_dwordx4 v[{X+4*i}:{X+4*i+3}], v4, s[4:5] offset:{off} {ldf}")
        if i%3==2 and not nb: a(f"v_add_u32 v4, s{29 if il in (1,3) and i==26 else 17}, v4")
    assert eat=='s' or eat<W
    cum=[W]
    for p in range(14): cum.append(min(L,cum[-1]+(int(sched[p]) if sched and p<len(sched) else 2)))
    assert all(cum[p]>=2*p+2 for p in range(14))
    for i in range(W): ldx(i)
    if 'k' not in diag: stamp(1)
    A=T; ACC=T+28; ML=T+8; MH=T+12; TA=T+16; TB=T+20
    a("v_and_b32 v9, 1, v2")
    a("v_lshlrev_b32 v9, 4, v9")
    a("s_movk_i32 s18, 0x3f80")
    a("v_lshlrev_b32 v9, v9, s18")
    for d in range(4): a(f"v_mov_b32 v{A+d}, 0")
    for d in range(4): a(f"v_mov_b32_dpp v{A+d}, v9 quad_perm:[0,1,2,3] row_mask:0xf bank_mask:{1<<d:#x}")
    a("s_mov_b32 s19, 0xffff0000")
    a("v_lshrrev_b32 v9, 4, v2")
    a("v_and_b32 v10, 4, v2")
    a("v_add_u32 v9, v9, v10")
    a("v_lshl_add_u32 v9, v3, 3, v9")
    a("v_and_b32 v10, 3, v2")
    a("v_lshl_add_u32 v9, v9, 2, v10")
    a("s_and_b32 s27, s2, 7")
    a("s_lshr_b32 s20, s2, 3")
    a(f"s_mul_i32 s20, s20, {SS}")
    a(f"s_mul_i32 s28, s27, {GI}")
    a("s_add_u32 s20, s20, s28")
    a("v_lshl_add_u32 v9, v9, 4, s20")
    extra=0
    a("s_mov_b32 s22, 0x07060302")
    if 'o' in touch: a("global_load_dword v5, v1, s[10:11]"); extra+=1
    for p in range(L//2):
        i=2*p; xa=X+4*i; xb=xa+4
        a(f"s_waitcnt vmcnt({len(ops)-1-ops.index(i+1)})")
        if p==0 and 'k' not in diag: stamp(2)
        if p==L//2-2:
            if eat=='s': a("s_waitcnt lgkmcnt(0)\nv_mov_b32 v8, s26")
            a(f"v_add_u32 v8, {KEY:#x}, v8")
        nxt=range(cum[p],cum[p+1])
        if pk:
            AC2=T+24
            a(f"v_mfma_f32_16x16x32_bf16 v[{ACC}:{ACC+3}], v[{A}:{A+3}], v[{xa}:{xa+3}], {'0' if p==0 else f'v[{ACC}:{ACC+3}]'}")
            for k in nxt: ldx(k)
            for d in range(2): a(f"v_pk_maximum3_f16 v{MH+d}, v{xa+d if p==0 else MH+d}, v{xa+d}, v{xb+d}")
            a(f"v_mfma_f32_16x16x32_bf16 v[{AC2}:{AC2+3}], v[{A}:{A+3}], v[{xb}:{xb+3}], {'0' if p==0 else f'v[{AC2}:{AC2+3}]'}")
            for d in range(2,4): a(f"v_pk_maximum3_f16 v{MH+d}, v{xa+d if p==0 else MH+d}, v{xa+d}, v{xb+d}")
            continue
        for k in nxt: ldx(k)
        c = "0" if p==0 else f"v[{ACC}:{ACC+3}]"
        a(f"v_mfma_f32_16x16x32_bf16 v[{ACC}:{ACC+3}], v[{A}:{A+3}], v[{xa}:{xa+3}], {c}")
        for d in range(4): a(f"v_lshlrev_b32 v{TA+d}, 16, v{xa+d}")
        a(f"v_mfma_f32_16x16x32_bf16 v[{ACC}:{ACC+3}], v[{A}:{A+3}], v[{xb}:{xb+3}], v[{ACC}:{ACC+3}]")
        for d in range(4): a(f"v_lshlrev_b32 v{TB+d}, 16, v{xb+d}")
        for d in range(4):
            if p==0: a(f"v_max_f32 v{MH+d}, v{xa+d}, v{xb+d}")
            else: a(f"v_max3_f32 v{MH+d}, v{MH+d}, v{xa+d}, v{xb+d}")
        for d in range(4):
            if p==0: a(f"v_max_f32 v{ML+d}, v{TA+d}, v{TB+d}")
            else: a(f"v_max3_f32 v{ML+d}, v{ML+d}, v{TA+d}, v{TB+d}")
    stamp(3)
    if pk:
        a("s_movk_i32 s23, 3")
        a(f"v_permlane32_swap_b32 v{MH+0}, v{MH+2}")
        a(f"v_permlane32_swap_b32 v{MH+1}, v{MH+3}")
        a(f"v_pk_maximum3_f16 v{MH}, v{MH}, v{MH+2}, v{MH+2}")
        a(f"v_pk_maximum3_f16 v{MH+1}, v{MH+1}, v{MH+3}, v{MH+3}")
        a(f"v_mov_b32 v{ACC+3}, v8")
        a(f"v_pk_add_f32 v[{ACC}:{ACC+1}], v[{ACC}:{ACC+1}], v[{AC2}:{AC2+1}]")
        a(f"v_permlane16_swap_b32 v{MH+0}, v{MH+1}")
        a(f"v_pk_maximum3_f16 v{MH}, v{MH}, v{MH+1}, v{MH+1}")
        a(f"v_add_f32_dpp v{ACC+0}, v{ACC+0}, v{ACC+0} row_ror:8 row_mask:0xf bank_mask:0xf")
        a(f"v_add_f32_dpp v{ACC+1}, v{ACC+1}, v{ACC+1} row_ror:8 row_mask:0xf bank_mask:0xf")
        a(f"v_mov_b32_dpp v{MH+1}, v{MH} row_ror:8 row_mask:0xf bank_mask:0xf")
        if cap1: a(f"v_bitop3_b32 v{ACC+3}, v{ACC}, v{ACC+1}, v8 bitop3:0x96")
        a(f"v_cmp_u_f16_sdwa vcc, v{MH}, v{MH} src0_sel:WORD_0 src1_sel:WORD_1")
        a(f"v_pk_maximum3_f16 v{ACC+2}, v{MH}, v{MH+1}, v{MH+1}")
        a("s_branch L_exact" if fbtest else "s_cbranch_vccnz L_exact")
        a("L_exactdone:")
        if cap1: a(f"v_xor_b32 v{ACC+3}, v{ACC+3}, v{ACC+2}")
        a("s_mov_b32 exec_lo, 0x00ff00ff\ns_mov_b32 exec_hi, 0x00ff00ff")
    else:
        a(f"v_permlane32_swap_b32 v{MH+0}, v{MH+2}")
        a(f"v_permlane32_swap_b32 v{MH+1}, v{MH+3}")
        a(f"v_permlane32_swap_b32 v{ML+0}, v{ML+2}")
        a(f"v_permlane32_swap_b32 v{ML+1}, v{ML+3}")
        a(f"v_max_f32 v{MH+0}, v{MH+0}, v{MH+2}")
        a(f"v_max_f32 v{MH+1}, v{MH+1}, v{MH+3}")
        a(f"v_max_f32 v{ML+0}, v{ML+0}, v{ML+2}")
        a(f"v_max_f32 v{ML+1}, v{ML+1}, v{ML+3}")
        a(f"v_add_f32_dpp v{ACC+0}, v{ACC+0}, v{ACC+0} row_ror:8 row_mask:0xf bank_mask:0xf")
        a(f"v_permlane16_swap_b32 v{MH+0}, v{MH+1}")
        a(f"v_permlane16_swap_b32 v{ML+0}, v{ML+1}")
        a(f"v_add_f32_dpp v{ACC+1}, v{ACC+1}, v{ACC+1} row_ror:8 row_mask:0xf bank_mask:0xf")
        a(f"v_max_f32 v{MH+0}, v{MH+0}, v{MH+1}")
        a(f"v_max_f32 v{ML+0}, v{ML+0}, v{ML+1}")
        a(f"v_mov_b32 v{ACC+3}, v8")
        a(f"v_max_f32_dpp v{MH+0}, v{MH+0}, v{MH+0} row_ror:8 row_mask:0xf bank_mask:0xf")
        a(f"v_max_f32_dpp v{ML+0}, v{ML+0}, v{ML+0} row_ror:8 row_mask:0xf bank_mask:0xf")
        a("s_mov_b32 exec_lo, 0x00ff00ff\ns_mov_b32 exec_hi, 0x00ff00ff")
        a(f"v_perm_b32 v{ACC+2}, v{MH+0}, v{ML+0}, s22")
    a(f"global_store_dwordx4 v9, v[{ACC}:{ACC+3}], s[14:15] {pub}")
    a("s_mov_b64 exec, -1")
    stamp(4)
    S=T; U=T+8
    a("s_lshl_b32 s27, s27, 12")
    a(f"s_add_u32 s27, s27, {CB}")
    a("v_lshl_add_u32 v12, v0, 2, s27")
    a("v_and_b32 v11, 0xffff, v8")
    if cap3: a("v_not_b32 v10, v8")
    a(f"s_mov_b32 s21, {spin}")
    for d in range(4):
        a(f"v_lshlrev_b32 v{U+2*d}, 16, v{X+d}")
        a(f"v_and_b32 v{U+2*d+1}, s19, v{X+d}")
    if 'f' not in diag: stamp(5)
    a("L_poll3:")
    a("global_load_dword v10, v12, s[14:15] sc1")
    a(f"s_cmp_eq_u32 s21, {spin-fb}")
    a("s_cbranch_scc1 L_fb")
    a("L_fbdone:")
    a("s_sub_u32 s21, s21, 1")
    a("s_cbranch_scc1 L_poll3done")
    a(f"s_waitcnt vmcnt({cap3})")
    a("v_cmp_ne_u16 vcc, v10, v11")
    a("s_cbranch_vccnz L_poll3")
    a("L_poll3done:")
    stamp(6)
    a(f"v_xor_b32 v{S}, v10, v11")
    a(f"v_xor_b32 v{S+4}, v10, v11")
    a(f"v_xor_b32_dpp v{S}, v10, v11 row_ror:8 row_mask:0xf bank_mask:0xc")
    a(f"v_xor_b32_dpp v{S+4}, v10, v11 row_ror:8 row_mask:0xf bank_mask:0x3")
    a(f"v_mov_b32 v{S+1}, v{S}")
    a(f"v_mov_b32 v{S+5}, v{S+4}")
    a("s_nop 0")
    a(f"v_permlane16_swap_b32 v{S}, v{S+1}")
    a(f"v_permlane16_swap_b32 v{S+4}, v{S+5}")
    a(f"v_mov_b64 v[{S+2}:{S+3}], v[{S}:{S+1}]")
    a(f"v_mov_b64 v[{S+6}:{S+7}], v[{S+4}:{S+5}]")
    a("s_nop 0")
    for k in (0,1,4,5): a(f"v_permlane32_swap_b32 v{S+k}, v{S+k+2}")
    stamp(7)
    for i in range(L):
        x=X+4*i
        for d in range(4):
            if i==0: break
            a(f"v_lshlrev_b32 v{U+2*d}, 16, v{x+d}")
            a(f"v_and_b32 v{U+2*d+1}, s19, v{x+d}")
        for d in range(4): a(f"v_pk_mul_f32 v[{U+2*d}:{U+2*d+1}], v[{U+2*d}:{U+2*d+1}], v[{S+2*d}:{S+2*d+1}]")
        for d in range(4): a(f"v_cvt_pk_bf16_f32 v{x+d}, v{U+2*d}, v{U+2*d+1}")
        off=(i%3-1)*3072
        if nb:
            d,off=seq[i]
            if d: a(f"v_add_u32 v1, s{32+ds.index(d)}, v1")
        a(f"global_store_dwordx4 v1, v[{x}:{x+3}], s[10:11] offset:{off} {st2[1] if st2 and (i<st2[0] if st2[0]>0 else (i%-st2[0]==0)) else stf}")
        if i==clean:
            a("s_mov_b32 exec_lo, 0x00ff00ff\ns_mov_b32 exec_hi, 0x00ff00ff")
            a(f"global_store_dwordx4 v9, v[{ACC}:{ACC+3}], s[14:15] sc1")
            a("s_mov_b64 exec, -1")
        if i%3==2 and not nb: a(f"v_add_u32 v1, s{29 if il in (1,3) and i==26 else 17}, v1")
    def dump():
        if stamps:
            stamp(8); a("s_waitcnt vmcnt(0)"); stamp(9)
            a("s_waitcnt lgkmcnt(0)")
            a(f"s_mul_i32 s16, s2, 3\ns_add_u32 s16, s16, s3\ns_lshl_b32 s16, s16, 6\ns_add_u32 s16, s16, {STAMP}")
            a("s_mov_b64 exec, -1")
            a("v_mov_b32 v1, s16")
            for j in range(10): a(f"v_mov_b32 v{16+j}, s{60+2*j}")
            a("v_mov_b32 v26, s21\nv_mov_b32 v27, s25")
            a("s_mov_b64 exec, 1")
            for j in range(3): a(f"global_store_dwordx4 v1, v[{16+4*j}:{19+4*j}], s[14:15] offset:{16*j}")
    dump()
    if amp:
        stamp(8); a("s_waitcnt vmcnt(0)"); stamp(9)
        if amp[4] is not None: a(f"s_cmp_eq_u32 s2, {amp[4]}\ns_cbranch_scc0 L_end")
        a("s_memrealtime s[40:41]\ns_waitcnt lgkmcnt(0)")
        a(f"s_sub_u32 s16, s{60+2*amp[1]}, s{60+2*amp[0]}\ns_mul_i32 s16, s16, {amp[2]}\ns_lshr_b32 s16, s16, 4\ns_min_u32 s16, s16, 100000")
        if len(amp)>5: a(f"s_mov_b32 s16, {amp[5]}")
        a("L_amp:\ns_memrealtime s[42:43]\ns_waitcnt lgkmcnt(0)\ns_sub_u32 s17, s42, s40\ns_cmp_lt_u32 s17, s16\ns_cbranch_scc1 L_amp")
    a("L_end:\ns_endpgm")
    a("L_fb:")
    a("s_waitcnt vmcnt(0)")
    a("s_mov_b32 exec_lo, 0x00ff00ff\ns_mov_b32 exec_hi, 0x00ff00ff")
    a(f"global_store_dwordx4 v9, v[{ACC}:{ACC+3}], s[14:15] sc1")
    a("s_mov_b64 exec, -1")
    a("v_add_u32 v12, 2048, v12")
    a("s_branch L_fbdone")
    def redn(Y,n,Z):
        V=Z+4
        a(f"v_pk_add_f32 v[{Z}:{Z+1}], v[{Y}:{Y+1}], v[{Y+4}:{Y+5}]")
        a(f"v_pk_add_f32 v[{V}:{V+1}], v[{Y+8}:{Y+9}], v[{Y+12}:{Y+13}]")
        for i in range(n): a(f"v_lshlrev_b32 v{V+2+i}, 16, v{Y+4*i+2}")
        if n==7:
            a(f"v_pk_add_f32 v[{Z}:{Z+1}], v[{Z}:{Z+1}], v[{Y+16}:{Y+17}]")
            a(f"v_pk_add_f32 v[{V}:{V+1}], v[{V}:{V+1}], v[{Y+20}:{Y+21}]")
        a(f"v_max3_f32 v{Z+2}, v{Y+2}, v{Y+6}, v{Y+10}")
        a(f"v_max3_f32 v{Z+3}, v{V+2}, v{V+3}, v{V+4}")
        if n==7:
            a(f"v_pk_add_f32 v[{Z}:{Z+1}], v[{Z}:{Z+1}], v[{Y+24}:{Y+25}]")
            a(f"v_max3_f32 v{Z+2}, v{Z+2}, v{Y+14}, v{Y+18}")
            a(f"v_max3_f32 v{Z+3}, v{Z+3}, v{V+5}, v{V+6}")
        a(f"v_pk_add_f32 v[{Z}:{Z+1}], v[{Z}:{Z+1}], v[{V}:{V+1}]")
        if n==7:
            a(f"v_max3_f32 v{Z+2}, v{Z+2}, v{Y+22}, v{Y+26}")
            a(f"v_max3_f32 v{Z+3}, v{Z+3}, v{V+7}, v{V+8}")
        else:
            a(f"v_max_f32 v{Z+2}, v{Z+2}, v{Y+14}")
            a(f"v_max_f32 v{Z+3}, v{Z+3}, v{V+5}")
        a(f"v_permlane32_swap_b32 v{Z}, v{Z+1}")
    a("L_red:")
    a(f"v_mov_b32 v39, {EOFF}")
    a("s_and_b32 s27, s2, 7")
    a("s_mov_b32 s22, 0x07060302")
    a("s_waitcnt lgkmcnt(0)")
    a("global_load_dword v15, v39, s[14:15]")
    a("s_cmp_lt_u32 s2, 8")
    a("s_cbranch_scc1 L_mlp")
    a("s_cmp_eq_u32 s3, 2")
    a("s_cbranch_scc1 L_end")
    a("s_lshr_b32 s16, s2, 3")
    a("s_lshl_b32 s16, s16, 1")
    a("s_add_u32 s16, s16, s3")
    a("s_lshl_b32 s16, s16, 8")
    a(f"s_mul_i32 s17, s27, {GI}")
    a("s_add_u32 s17, s17, s16")
    a(f"s_add_u32 s17, s17, {2*SS-512}")
    a("s_mul_i32 s18, s27, 1536")
    a("s_add_u32 s18, s18, s16")
    a(f"s_add_u32 s18, s18, {OUTB-512}")
    a("v_lshrrev_b32 v4, 4, v2")
    a("v_and_b32 v6, 15, v2")
    a("v_lshl_add_u32 v8, v6, 4, s17")
    a("v_lshl_add_u32 v7, v6, 4, s18")
    a(f"v_mul_u32_u24 v6, {SS}, v4")
    a("v_add_u32 v8, v8, v6")
    a(f"v_mul_u32_u24 v6, {RS}, v4")
    a("v_add_u32 v7, v7, v6")
    a(f"v_add_u32 v6, {4*RS}, v7")
    for i in range(1,4): a(f"v_add_u32 v{8+i}, {8*SS*i}, v8")
    a(f"s_mov_b32 s21, {spin}")
    Y=16; Z=48
    def ld1(i): a(f"global_load_dwordx4 v[{Y+4*i}:{Y+4*i+3}], v{8+i//2}, s[14:15] offset:{(2*(i&1)-1)*2*SS} sc1")
    for i in range(7): ld1(i)
    a(f"s_waitcnt vmcnt({0 if cap1 else 7})")
    a(f"v_add_u32 v15, {KEY:#x}, v15")
    stamp(1)
    a("s_branch L_chk1")
    if leanA:
        a("L_poll1:")
        for i in range(7): ld1(i)
        a("s_sub_u32 s21, s21, 1")
        a("s_cbranch_scc1 L_poll1done")
        a("L_chk1:")
        for j in range(3):
            a(f"s_waitcnt vmcnt({5-2*j})")
            a(f"v_bitop3_b32 v{12+j}, v{Y+8*j+3}, v{Y+8*j+7}, v15 bitop3:0x7e")
        a("v_or3_b32 v12, v12, v13, v14")
        a("s_waitcnt vmcnt(0)")
        a(f"v_bitop3_b32 v12, v{Y+27}, v15, v12 bitop3:0xbe")
        a("v_cmpx_ne_u32 vcc, 0, v12")
        a("s_cbranch_vccnz L_poll1")
    else:
        a("L_poll1:")
        for i in range(7):
            if mask1: a(f"s_mov_b64 exec, s[{40+2*i}:{41+2*i}]")
            ld1(i)
        a("s_mov_b64 exec, -1")
        a("s_sub_u32 s21, s21, 1")
        a("s_cbranch_scc1 L_poll1done")
        a("L_chk1:")
        for i in range(7):
            if cap1:
                if i==0: a(f"s_waitcnt vmcnt({cap1})")
                a(f"v_bitop3_b32 v12, v{Y+4*i}, v{Y+4*i+1}, v{Y+4*i+2} bitop3:0x96")
                a(f"v_xor_b32 v13, v15, v{Y+4*i+3}")
                a(f"v_cmp_ne_u32 s[{40+2*i}:{41+2*i}], v12, v13")
            else:
                a(f"s_waitcnt vmcnt({6-i})")
                a(f"v_cmp_ne_u32 s[{40+2*i}:{41+2*i}], v15, v{Y+4*i+3}")
            if i==2: a("s_or_b64 s[54:55], s[40:41], s[42:43]")
            if i>2: a(f"s_or_b64 s[54:55], s[54:55], s[{38+2*i}:{39+2*i}]")
        a("s_or_b64 s[54:55], s[54:55], s[52:53]")
        a("s_cbranch_scc1 L_poll1")
    a("L_poll1done:")
    if leanA: a("s_mov_b64 exec, -1")
    stamp(2)
    redn(Y,7,Z)
    a(f"v_add_f32 v12, v{Z}, v{Z+1}")
    a(f"v_permlane32_swap_b32 v{Z+3}, v{Z+2}")
    a(f"v_add_f32 v13, v{Z}, v{Z+1}")
    a(f"v_max_f32 v8, v{Z+2}, v{Z+3}")
    a(f"v_max_f32 v9, v{Z+2}, v{Z+3}")
    a("v_permlane16_swap_b32 v12, v13")
    a("v_add_f32 v12, v12, v13")
    a("v_permlane16_swap_b32 v8, v9")
    a("v_mov_b32 v13, v12")
    a("v_max_f32 v10, v8, v9")
    a("v_max_f32 v11, v8, v9")
    a("v_permlane32_swap_b32 v12, v13")
    a("v_bitop3_b32 v15, v12, v13, v15 bitop3:0x96" if cap2 else "s_nop 0")
    a("v_permlane32_swap_b32 v10, v11")
    if REP==1: a("s_mov_b64 exec, 0xffff")
    a("v_perm_b32 v14, v11, v10, s22")
    if cap2: a("v_xor_b32 v15, v15, v14")
    a("global_store_dwordx4 v7, v[12:15], s[14:15] sc1")
    if REP>1: a("global_store_dwordx4 v6, v[12:15], s[14:15] sc1")
    if wb=='a': a("buffer_wbl2 sc1")
    if stamps:
        stamp(4); a("s_branch L_nobump")
    else: a("s_endpgm")
    a("L_mlp:")
    G=T; D1=T+20; H=W1; RW=48
    a("v_and_b32 v12, 31, v2")
    a("v_lshl_add_u32 v12, v3, 5, v12")
    a("v_lshrrev_b32 v14, 5, v2")
    a("v_mul_u32_u24 v14, 384, v14")
    a("v_lshl_add_u32 v34, v12, 2, v14")
    a("v_add_lshl_u32 v12, v12, v14, 4")
    a(f"s_mul_i32 s28, s27, {RS}")
    a(f"s_add_u32 s28, s28, {OUTB+3072}")
    a("v_add_u32 v36, s28, v12")
    a("s_mul_i32 s24, s3, 6144")
    a("v_lshl_add_u32 v12, v2, 4, s24")
    a("s_mov_b32 m0, s24")
    a("v_add_u32 v13, 3072, v12")
    for k in range(3): a(f"global_load_lds_dwordx4 v12, s[6:7] offset:{1024*k}")
    a(f"s_add_u32 m0, m0, 3072")
    a("v_lshrrev_b32 v14, 4, v2")
    for k in range(3): a(f"global_load_lds_dwordx4 v13, s[6:7] offset:{1024*k}")
    a("v_mul_u32_u24 v12, 1536, v14")
    a("v_lshl_add_u32 v12, v3, 7, v12")
    a("v_and_b32 v13, 7, v2")
    a("v_lshl_add_u32 v12, v13, 4, v12")
    a("v_and_b32 v13, 8, v2")
    a("v_add_u32 v12, v12, v13")
    for u in range(3):
        for i in range(4): a(f"global_load_dwordx2 v[{RW+8*u+2*i}:{RW+8*u+2*i+1}], v12, s[8:9] offset:{384*i}")
        if u<2: a("v_add_u32 v12, 6144, v12")
    a("s_lshl_b32 s28, s27, 12")
    a(f"s_add_u32 s28, s28, {CB}")
    a("v_lshl_add_u32 v37, v0, 2, s28")
    a("global_load_dword v5, v37, s[14:15] sc1")
    for i in range(4 if atomB is None else 0): a(f"global_load_dwordx4 v[{G+4*i}:{G+4*i+3}], v36, s[14:15] offset:{1536*i-3072} sc1")
    a("v_bfe_u32 v12, v2, 3, 1")
    a("v_bfe_u32 v13, v2, 2, 1")
    a("v_lshl_add_u32 v12, v12, 3, v13")
    a("v_lshl_add_u32 v12, v14, 1, v12")
    a("v_mul_u32_u24 v12, 96, v12")
    a("v_and_b32 v13, 3, v2")
    a("v_lshl_add_u32 v32, v13, 3, v12")
    a("v_and_b32 v12, 1, v2")
    a("v_mul_u32_u24 v12, 384, v12")
    a("v_lshl_add_u32 v35, v14, 4, v12")
    a("s_mov_b32 s23, 0x05040100")
    a(f"s_mov_b32 s20, {f2u(1.0/50176):#x}")
    a("s_mov_b32 s19, 0xffff0000")
    a("v_lshl_add_u32 v12, s27, 2, v39")
    a("v_lshl_add_u32 v33, v2, 2, v39")
    a(f"s_waitcnt vmcnt({5 if atomB is None else 1})")
    a("s_barrier")
    a(f"v_add_u32 v15, {KEY:#x}, v15")
    a("s_mov_b64 exec, 1")
    a("global_store_dword v12, v15, s[14:15] offset:256 sc1")
    a("s_mov_b64 exec, -1")
    for s in range(6):
        for t in range(3):
            for h in range(2):
                r=W1+(s*3+t)*4+2*h
                a(f"ds_read_b64_tr_b16 v[{r}:{r+1}], v32 offset:{(32*s+16*h)*96+32*t}")
    for t in range(4):
        for u in range(3):
            for j in range(2):
                a(f"v_perm_b32 v{W2+6*t+2*u+j}, v{RW+8*u+4*j+2+(t>>1)}, v{RW+8*u+4*j+(t>>1)}, s{22 if t&1 else 23}")
    a("s_waitcnt vmcnt(1)")
    a("v_and_b32 v38, 0xffff, v15")
    stamp(1)
    a(f"s_mov_b32 s21, {spin}")
    for i in range(4): a(f"s_mov_b64 s[{40+2*i}:{41+2*i}], -1")
    if atomB is not None:
        for k in range(8): a(f"v_mov_b64 v[{G+2*k}:{G+2*k+1}], 0")
        a("v_mov_b64 v[6:7], 0")
        a(f"s_mul_i32 s28, s27, {GI}\ns_add_u32 s28, s28, {atomB*SS+12}\nv_mov_b32 v12, s28")
        a("L_gate:")
        a("global_load_dword v13, v12, s[14:15] sc1")
        a("s_sub_u32 s21, s21, 1")
        a("s_cbranch_scc1 L_gated")
        a("s_waitcnt vmcnt(0)")
        a("v_cmp_ne_u32 vcc, v13, v15")
        a("s_cbranch_vccnz L_gate")
        a("L_gated:")
        a(f"s_mov_b32 s21, {spin}")
    def ld2(i):
        if atomB is not None:
            for h in range(2): a(f"global_atomic_or_x2 v[{G+4*i+2*h}:{G+4*i+2*h+1}], v36, v[6:7], s[14:15] offset:{1536*i-3072+8*h} sc0 sc1")
        else: a(f"global_load_dwordx4 v[{G+4*i}:{G+4*i+3}], v36, s[14:15] offset:{1536*i-3072} sc1")
    if leanB:
        a("L_poll2:")
        for i in range(4): ld2(i)
        a("s_sub_u32 s21, s21, 1")
        a("s_cbranch_scc1 L_poll2done")
        if cap2:
            a(f"s_waitcnt vmcnt({max(cap2,0)})")
            for i in range(4): a(f"v_bitop3_b32 v{8+i}, v{G+4*i}, v{G+4*i+1}, v{G+4*i+2} bitop3:0x96")
            for i in range(4): a(f"v_xor_b32 v{8+i}, v{8+i}, v{G+4*i+3}")
            a("v_bitop3_b32 v8, v8, v9, v15 bitop3:0x7e")
            a("v_bitop3_b32 v9, v10, v11, v15 bitop3:0x7e")
        else:
            a("s_waitcnt vmcnt(2)")
            a(f"v_bitop3_b32 v8, v{G+3}, v{G+7}, v15 bitop3:0x7e")
            a("s_waitcnt vmcnt(0)")
            a(f"v_bitop3_b32 v9, v{G+11}, v{G+15}, v15 bitop3:0x7e")
        a("v_or_b32 v8, v8, v9")
        a("v_cmpx_ne_u32 vcc, 0, v8")
        a("s_cbranch_vccnz L_poll2")
    else:
        a("L_poll2:")
        for i in range(4):
            if mask2: a(f"s_mov_b64 exec, s[{40+2*i}:{41+2*i}]")
            ld2(i)
        if mask2: a("s_mov_b64 exec, -1")
        a("s_sub_u32 s21, s21, 1")
        a("s_cbranch_scc1 L_poll2done")
        for i in range(4):
            if cap2:
                if i==0: a(f"s_waitcnt vmcnt({max(cap2,0)})")
                a(f"v_bitop3_b32 v8, v{G+4*i}, v{G+4*i+1}, v{G+4*i+2} bitop3:0x96")
                a(f"v_xor_b32 v9, v15, v{G+4*i+3}")
                a(f"v_cmp_ne_u32 s[{40+2*i}:{41+2*i}], v8, v9")
            else:
                a(f"s_waitcnt vmcnt({3-i})")
                a(f"v_cmp_ne_u32 s[{40+2*i}:{41+2*i}], v15, v{G+4*i+3}")
            if i==2: a("s_or_b64 s[52:53], s[40:41], s[42:43]")
            if i==3: a("s_or_b64 s[52:53], s[52:53], s[44:45]")
        a("s_or_b64 s[52:53], s[52:53], s[46:47]")
        a("s_cbranch_scc1 L_poll2")
    a("L_poll2done:")
    if leanB: a("s_mov_b64 exec, -1")
    stamp(5)
    redn(G,4,16); G=16
    a(f"v_add_f32 v{G}, v{G}, v{G+1}")
    a(f"v_permlane32_swap_b32 v{G+3}, v{G+2}")
    a(f"v_max_f32 v{G+2}, v{G+2}, v{G+3}")
    a(f"v_mul_f32 v{G}, s20, v{G}")
    a(f"v_and_b32 v{G+2}, s19, v{G+2}")
    a("s_nop 1")
    a(f"v_permlane32_swap_b32 v{G}, v{G+2}")
    a(f"v_cvt_pk_bf16_f32 v{G}, v{G}, v{G+2}")
    a(f"ds_write_b32 v34, v{G} offset:{XB}")
    a("s_waitcnt lgkmcnt(0)")
    a("s_barrier")
    stamp(6)
    B=[40,44,48,52,56,60]
    for s in range(6): a(f"ds_read_b128 v[{B[s]}:{B[s]+3}], v35 offset:{XB+64*s}")
    if fm:
        D2=W1+8; P=W1+24
        def m1(s,t):
            w=W1+(s*3+t)*4; d=D1+4*t
            if t==0: a(f"s_waitcnt lgkmcnt({5-s})")
            a(f"v_mfma_f32_16x16x32_bf16 v[{d}:{d+3}], v[{w}:{w+3}], v[{B[s]}:{B[s]+3}], {'0' if s==0 else f'v[{d}:{d+3}]'}")
        def cv(t):
            for j in range(2): a(f"v_cvt_pk_bf16_f32 v{H+2*t+j}, v{D1+4*t+2*j}, v{D1+4*t+2*j+1}")
        def rl(t):
            for j in range(2): a(f"v_pk_max_i16 v{H+2*t+j}, v{H+2*t+j}, 0")
        def m2a(t): a(f"v_mfma_f32_16x16x32_bf16 v[{D2+4*t}:{D2+4*t+3}], v[{H}:{H+3}], v[{W2+6*t}:{W2+6*t+3}], 0")
        def m2b(t): a(f"v_mfma_f32_16x16x16_bf16 v[{D2+4*t}:{D2+4*t+3}], v[{H+4}:{H+5}], v[{W2+6*t+4}:{W2+6*t+5}], v[{D2+4*t}:{D2+4*t+3}]")
        def cq(t): a(f"v_cvt_pk_bf16_f32 v{P}, v{D2+4*t}, v{D2+4*t+1}")
        n=lambda k:a(f"s_nop {k-1}")
        for s in range(2):
            for t in range(3): m1(s,t)
        for s in range(2,6): m1(s,0)
        m1(2,1); n(2); m1(3,1); n(2); m1(4,1); n(1); m1(5,1); cv(0)
        m1(2,2); rl(0); m1(3,2); n(1); m1(4,2); cv(1); m1(5,2); rl(1); n(2)
        m2a(0); n(1); m2a(1); n(1); cv(2); m2a(2); rl(2); m2a(3); n(1)
        m2b(0); n(2); m2b(1); n(2); m2b(2); n(1); m2b(3)
        cq(0); a("s_mov_b32 exec_lo, s19"); n(1); cq(1); a("s_mov_b32 exec_lo, 0"); n(1); cq(2); a("s_mov_b32 exec_hi, s19"); cq(3)
        a("s_mov_b64 exec, -1")
        a(f"v_lshlrev_b32 v{P+1}, 16, v{P}")
        a(f"v_and_b32 v{P}, s19, v{P}")
        a(f"v_add_f32 v{P}, v{P}, v{P+1}")
        a(f"v_cvt_pk_bf16_f32 v{P}, 0, v{P}")
        a(f"v_mul_f32 v{P}, {f2u(-1.4426950408889634):#x}, v{P}")
        a(f"v_exp_f32 v{P}, v{P}")
        n(1)
        a(f"v_add_f32 v{P}, 1.0, v{P}")
        a(f"v_rcp_f32 v{P}, v{P}")
        n(1)
        a(f"v_cvt_pk_bf16_f32 v{P}, 0, v{P}")
        a(f"v_or_b32 v{P}, v{P}, v38")
    else:
        for s in range(6):
            a(f"s_waitcnt lgkmcnt({5-s})")
            for t in range(3):
                w=W1+(s*3+t)*4; d=D1+4*t
                c="0" if s==0 else f"v[{d}:{d+3}]"
                a(f"v_mfma_f32_16x16x32_bf16 v[{d}:{d+3}], v[{w}:{w+3}], v[{B[s]}:{B[s]+3}], {c}")
        a("s_nop 5")
        for t in range(3):
            for i in range(4): a(f"v_maximum3_f32 v{D1+4*t+i}, v{D1+4*t+i}, 0, 0")
            a(f"v_cvt_pk_bf16_f32 v{H+2*t}, v{D1+4*t}, v{D1+4*t+1}")
            a(f"v_cvt_pk_bf16_f32 v{H+2*t+1}, v{D1+4*t+2}, v{D1+4*t+3}")
        D2=W1+8
        a("s_nop 1")
        for t in range(4):
            a(f"v_mfma_f32_16x16x32_bf16 v[{D2+4*t}:{D2+4*t+3}], v[{H}:{H+3}], v[{W2+6*t}:{W2+6*t+3}], 0")
        for t in range(4):
            a(f"v_mfma_f32_16x16x16_bf16 v[{D2+4*t}:{D2+4*t+3}], v[{H+4}:{H+5}], v[{W2+6*t+4}:{W2+6*t+5}], v[{D2+4*t}:{D2+4*t+3}]")
        a("s_nop 4")
        P=W1+24
        for t in range(4): a(f"v_cvt_pk_bf16_f32 v{P+t}, v{D2+4*t}, v{D2+4*t+1}")
        a(f"v_permlane16_swap_b32 v{P}, v{P+1}")
        a("s_nop 0")
        a(f"v_permlane16_swap_b32 v{P+2}, v{P+3}")
        a("s_nop 1")
        a(f"v_permlane32_swap_b32 v{P}, v{P+2}")
        a(f"v_lshlrev_b32 v{P+1}, 16, v{P}")
        a(f"v_and_b32 v{P}, s19, v{P}")
        a(f"v_add_f32 v{P}, v{P}, v{P+1}")
        a(f"v_cvt_pk_bf16_f32 v{P}, v{P}, v{P}")
        a(f"v_and_b32 v{P}, s19, v{P}")
        a(f"v_mul_f32 v{P}, {f2u(-1.4426950408889634):#x}, v{P}")
        a(f"v_exp_f32 v{P}, v{P}")
        a("s_nop 0")
        a(f"v_add_f32 v{P}, 1.0, v{P}")
        a(f"v_rcp_f32 v{P}, v{P}")
        a("s_nop 0")
        a(f"v_cvt_pk_bf16_f32 v{P}, v{P}, v{P}")
        a(f"v_and_or_b32 v{P}, v{P}, s19, v38")
    a(f"global_store_dword v37, v{P}, s[14:15]")
    stamp(7)
    a(f"global_store_dword v37, v{P}, s[14:15] offset:2048 sc1")
    if wb=='c': a("s_cmp_eq_u32 s3, 1\ns_cbranch_scc0 L_nowb\nbuffer_wbl2 sc1\nL_nowb:")
    a("s_or_b32 s23, s2, s3")
    a("s_cbranch_scc1 L_nobump")
    a(f"s_mov_b32 s25, {spin}")
    a("s_mov_b64 exec, 0xff")
    a("L_tok:")
    a("global_load_dword v12, v33, s[14:15] offset:256 sc1")
    a("s_sub_u32 s25, s25, 1")
    a("s_cbranch_scc1 L_tokdone")
    a("s_waitcnt vmcnt(0)")
    a("v_cmp_ne_u32 vcc, v12, v15")
    a("s_cbranch_vccnz L_tok")
    a("L_tokdone:")
    a("s_mov_b64 exec, 1")
    a("global_store_dword v39, v15, s[14:15] sc1")
    a("L_nobump:")
    if stamps:
        a(f"s_add_u32 s2, s2, {NP}")
        dump()
    a("s_endpgm")
    if pk:
        a("L_exact:")
        for p in range(L//2):
            xa=X+8*p; xb=xa+4
            for d in range(4): a(f"v_lshlrev_b32 v{TA+d}, 16, v{xa+d}\nv_lshlrev_b32 v{TB+d}, 16, v{xb+d}")
            for d in range(4): a(f"v_maximum3_f32 v{ML+d}, v{TA+d if p==0 else ML+d}, v{TA+d}, v{TB+d}")
            for d in range(4): a(f"v_and_b32 v{TA+d}, s19, v{xa+d}\nv_and_b32 v{TB+d}, s19, v{xb+d}")
            for d in range(4): a(f"v_maximum3_f32 v{MH+d}, v{TA+d if p==0 else MH+d}, v{TA+d}, v{TB+d}")
        for M in (ML,MH):
            a("s_nop 1")
            a(f"v_permlane32_swap_b32 v{M}, v{M+2}\nv_permlane32_swap_b32 v{M+1}, v{M+3}")
            a(f"v_maximum3_f32 v{M}, v{M}, v{M+2}, v{M+2}\nv_maximum3_f32 v{M+1}, v{M+1}, v{M+3}, v{M+3}\ns_nop 1")
            a(f"v_permlane16_swap_b32 v{M}, v{M+1}")
            a(f"v_maximum3_f32 v{M}, v{M}, v{M+1}, v{M+1}\ns_nop 1")
            a(f"v_mov_b32_dpp v{M+1}, v{M} row_ror:8 row_mask:0xf bank_mask:0xf")
            a(f"v_maximum3_f32 v{M}, v{M}, v{M+1}, v{M+1}")
        a(f"v_perm_b32 v{ACC+2}, v{MH}, v{ML}, s22")
        a("s_branch L_exactdone")
        a("s_endpgm")
    a("L_pad:")
    if not pk: a(f".fill ({192*PF}+256-(L_pad-{NAME}))/4, 4, 0xbf810000")
    a(f""".section .rodata,"a"
.p2align 6
.amdhsa_kernel {NAME}
  .amdhsa_next_free_vgpr 256
  .amdhsa_next_free_sgpr 96
  .amdhsa_accum_offset 256
  .amdhsa_group_segment_fixed_size 0
  .amdhsa_kernarg_size 48
  .amdhsa_user_sgpr_count 2
  .amdhsa_user_sgpr_kernarg_segment_ptr 1
  .amdhsa_system_sgpr_workgroup_id_x 1
  .amdhsa_float_denorm_mode_32 3
.end_amdhsa_kernel""")
    return "\n".join(o)+"\n"
if __name__=="__main__":
    kw=eval("dict(%s)"%(sys.argv[2] if len(sys.argv)>2 else ""))
    open(sys.argv[1],"w").write(gen(**kw))
```

```python
import sys
from gen5 import gen
def dry(s, M=True, R=True, D=1):
    L=s.split('\n')
    ix=lambda p,f=0:[j for j in range(f,len(L)) if L[j].startswith(p)][0]
    if M:
        m=ix("L_mlp:"); tr=[j for j in range(m,len(L)) if L[j].startswith("ds_read_b64_tr_b16")]
        assert len(tr)==36 and tr[-1]-tr[0]==35
        T=L[tr[0]:tr[-1]+1]; del L[tr[0]:tr[-1]+1]
        j=ix("v_perm_b32 v223,",m)
        L[j+1:j+1]=["s_mov_b32 s48, 1","s_branch L_poll2done","L_dryM:","s_mov_b32 s48, 0"]+T
        j=ix("ds_write_b32 v34, v16",m); L.insert(j+1,"s_cmp_eq_u32 s48, 1")
        j=ix("v_rcp_f32 v152, v152",m); assert L[j+1]=="s_nop 0"; L[j+1]="s_cbranch_scc1 L_dryM"
    if R:
        r=ix("L_red:"); j=ix("s_cmp_eq_u32 s3, 2",r); assert L[j+1]=="s_cbranch_scc1 L_end"; del L[j:j+2]
        j=ix("global_load_dwordx4 v[16:19], v8",r); L[j:j]=["s_cmp_eq_u32 s3, 2","s_cbranch_scc1 L_poll1done"]
        j=ix("v_pk_add_f32 v[48:49], v[16:17], v[20:21]",r); L.insert(j+1,"s_cmp_eq_u32 s3, 2")
        j=ix("v_permlane32_swap_b32 v12, v13",r); assert L[j+1]=="s_nop 0"; L[j+1]="s_cbranch_scc1 L_end"
    if D:
        j=ix("L_poll3:"); L[j:j]=["s_mov_b64 exec, 0","s_branch L_poll3done","L_dryD:","s_mov_b64 exec, -1"]
        j=ix("L_poll3done:")
        for k in range(D):
            j=ix("global_store_dwordx4 v1,",j)
            if k==D-1: L.insert(j,"s_cbranch_execz L_dryD")
            else: L[j:j+1]=[f"s_cbranch_execz L_sk{k}",L[j],f"L_sk{k}:"]
            j+=3
    return '\n'.join(L)
if __name__=="__main__":
    kw=eval("dict(%s)"%sys.argv[2]); open(sys.argv[1],"w").write(dry(gen(PF=40),**kw))
```
